```python
import torch

def _softmax(x, axis=-1):
    return torch.softmax(x, dim=axis)
def _gelu(x):
    return torch.nn.functional.gelu(x, approximate="tanh")
def _silu(x):
    return torch.nn.functional.silu(x)
def _sigmoid(x):
    return torch.sigmoid(x)
def _layernorm(x, axis=-1, eps=1e-5):
    m = x.mean(dim=axis, keepdim=True)
    v = x.var(dim=axis, keepdim=True, unbiased=False)
    return (x - m) / torch.sqrt(v + eps)
def _scatter_add(tgt, idx, src, axis=0):
    return tgt.clone().index_add_(axis, idx, src)
def _segment_sum(src, seg, n):
    out = torch.zeros((n,) + src.shape[1:], dtype=src.dtype)
    return out.index_add_(0, seg, src)
def _pad(x, pw):
    flat = tuple(v for pair in reversed(pw) for v in pair)
    return torch.nn.functional.pad(x, flat)

kernel_name = 'standalone__gqa_block_cached__near_ridge'

def setup_inputs():

    _w = (lambda a: (lambda t: t.to(torch.bfloat16) if t.is_floating_point() else t)(torch.as_tensor(a)))
    B, Sq, D = 8, 112, 448
    Hq, Hkv, Sk, Dh = 16, 8, 512, 256
    assert Hq % Hkv == 0, (Hq, Hkv)
    return {
        "x": _w((lambda *s: torch.randn(*s, dtype=torch.bfloat16) * 0.8)(B, Sq, D)),
        "k_cache": _w((lambda *s: torch.randn(*s, dtype=torch.bfloat16) * 0.8)(B, Hkv, Sk, Dh)),
        "v_cache": _w((lambda *s: torch.randn(*s, dtype=torch.bfloat16) * 0.05)(B, Hkv, Sk, Dh)),
        "wq": _w((lambda *s: torch.randn(*s, dtype=torch.bfloat16) * 0.8)(D, Hq * Dh) * (D ** -0.5)),
        "wo": _w((lambda *s: torch.randn(*s, dtype=torch.bfloat16) * 0.05)(Hq * Dh, D) * ((Hq * Dh) ** -0.5)),
    }

def reference(x, k_cache, v_cache, wq, wo):
    B, Sq, D = x.shape
    Hq, Dh = 16, 256
    Hkv = k_cache.shape[1]
    rep = Hq // Hkv
    q = (lambda x, *d: x.permute(*d))((x @ wq).reshape(B, Sq, Hq, Dh), 0, 2, 1, 3)
    k = (lambda x, n, axis: torch.repeat_interleave(x, n, dim=axis))(k_cache, rep, axis=1)
    v = (lambda x, n, axis: torch.repeat_interleave(x, n, dim=axis))(v_cache, rep, axis=1)
    scores = torch.einsum("bhqd,bhkd->bhqk", q, k) * (Dh ** -0.5)
    p = _softmax(scores, axis=-1)
    o = torch.einsum("bhqk,bhkd->bhqd", p, v)
    return (lambda x, *d: x.permute(*d))(o, 0, 2, 1, 3).reshape(B, Sq, Hq * Dh) @ wo
```

```python
import sys, struct, argparse

NAME = "standalone__gqa_block_cached__near_ridge"

def f32bits(x):
    return struct.unpack('<I', struct.pack('<f', x))[0]

class E:
    def __init__(self):
        self.out = []
        self.vm = 0; self.vmd = 0
        self.lg = 0; self.lgd = 0
    def raw(self, s): self.out.append(s)
    def i(self, s): self.out.append('    ' + s)
    def c(self, s): self.out.append('    ; ' + s)
    def vmem(self, s):
        self.i(s); self.vm += 1; return self.vm - 1
    def lds(self, s):
        self.i(s); self.lg += 1; return self.lg - 1
    def wait(self, vm=None, lg=None):
        parts = []
        if vm is not None and vm >= self.vmd:
            n = min(self.vm - (vm + 1), 63)
            parts.append(f'vmcnt({n})'); self.vmd = self.vm - n
        if lg is not None and lg >= self.lgd:
            n = min(self.lg - (lg + 1), 15)
            parts.append(f'lgkmcnt({n})'); self.lgd = self.lg - n
        if parts:
            self.i('s_waitcnt ' + ' '.join(parts))
    def wait_lg_all(self):
        self.i('s_waitcnt lgkmcnt(0)'); self.lgd = self.lg
    def wait_vm_all(self):
        self.i('s_waitcnt vmcnt(0)'); self.vmd = self.vm

S_X, S_K, S_V, S_WQ, S_WO, S_OUT, S_DBG, S_WS = 4, 6, 8, 10, 12, 14, 16, 18
R_X, R_K, R_V, R_WQ, R_WO0, R_WO1, R_P0, R_P1 = 20, 24, 28, 32, 36, 40, 44, 48
S_W = 52
S_RING = 53
S_TILE = 54
S_SOFF = 58
S_T0, S_T1, S_T2, S_T3 = 59, 60, 61, 62
S_C = 63
S_B, S_HKV, S_I, S_HQ, S_HALF = 64, 65, 66, 67, 68
S_ST = 69
R_DBG = 72
S_TS = 76
V_S = 0
V_O = 128
V_T = 192
V_DWQ, V_DK, V_DV, V_DWO = 208, 212, 216, 220
V_AB = 224
V_TRQ, V_TRV, V_TRO = 228, 230, 232
V_LIN = 234
V_LINW = 235
V_STW = 236
V_STR = 237
V_MX = 238
V_SUM = 240
V_NM = 242
V_SO0, V_SO1 = 244, 245
V_SUMW = 246
V_SUMR = 247
V_L = 248
V_X = 249
A_B = 0
A_F = 128

ACT = 0
RING0 = 65536
RINGSZ = 24576
NSLOT = 24

def srd(r): return f's[{r}:{r+3}]'
def vr(a, n): return f'v[{a}:{a+n-1}]'
def ar(a, n): return f'a[{a}:{a+n-1}]'

class Gen:
    def __init__(self, args):
        self.a = args
        self.e = E()
        self.nts = 0
        self.groups = []
        for g in range(14):
            self.groups.append((R_WQ, V_DWQ, ('imm', g * 262144)))
        for tt in range(4):
            for cb in range(4):
                self.groups.append((R_K, V_DK, ('add', S_TILE + tt, cb * 128)))
        for tt in range(4):
            for wp in range(4):
                self.groups.append((R_V, V_DV, ('add', S_TILE + tt, wp * 65536)))
        for ps in range(2):
            for g in range(8):
                self.groups.append((R_WO0 if ps == 0 else R_WO1, V_DWO, ('imm', g * 28672)))
        self.npieces = 4 * len(self.groups)
        self.nxt = 0
        self.freed = 0
        self.ptok = {}

    def ts(self):
        if not self.a.ts: return
        e = self.e
        e.wait_lg_all()
        e.i(f's_memtime s[{S_TS+2*self.nts}:{S_TS+2*self.nts+1}]')
        e.i('s_waitcnt lgkmcnt(0)')
        self.nts += 1

    def can_dma(self):
        return self.nxt < self.npieces and self.nxt < self.freed + NSLOT

    def dma(self):
        e = self.e
        p = self.nxt
        G, j = divmod(p, 4)
        r, vb, so = self.groups[G]
        if j == 0:
            slot = G % (NSLOT // 4)
            e.i(f's_add_u32 m0, s{S_RING}, {slot*4096}')
            if so[0] == 'imm':
                e.i(f's_mov_b32 s{S_SOFF}, {so[1]}')
            else:
                e.i(f's_add_u32 s{S_SOFF}, s{so[1]}, {so[2]}')
        off = f' offset:{1024*j}' if j else ''
        self.ptok[p] = e.vmem(f'buffer_load_dwordx4 v{vb+j}, {srd(r)}, s{S_SOFF} offen{off} lds')
        self.nxt += 1

    def slot_off(self, G):
        return (G % (NSLOT // 4)) * 4096

    def gemm(self, steps, extra=None, per_gap_extra=0):
        e = self.e
        PD = self.a.pd
        n = len(steps)
        extra = list(extra or [])
        def issue_reads_list(st):
            l = []
            if st['need'] is not None:
                l.append(('vm', st['need']))
            for k, t in enumerate(st['reads']):
                l.append(('rd', st, k, t))
            return l
        def do(item):
            if item[0] == 'vm':
                assert item[1] in self.ptok, (item, self.nxt, self.freed)
                e.wait(vm=self.ptok[item[1]])
            else:
                _, st, k, t = item
                st.setdefault('tok', {})[k] = e.lds(t)
        for j in range(min(PD, n)):
            for it in issue_reads_list(steps[j]): do(it)
        for j in range(n):
            st = steps[j]
            q = issue_reads_list(steps[j + PD]) if j + PD < n else []
            nm = len(st['mfmas'])
            nrd = sum(1 for x in q if x[0] == 'rd')
            per = -(-nrd // nm) if nm else nrd
            for mi, (t, deps) in enumerate(st['mfmas']):
                if deps:
                    e.wait(lg=max(st['tok'][d] for d in deps))
                if not self.a.nomfma:
                    e.i(t)
                if st['reads'] and e.lgd > max(st['tok'].values()):
                    self.freed = max(self.freed, st['free'])
                cnt = 0
                while q and cnt < per:
                    it = q.pop(0)
                    do(it)
                    if it[0] == 'rd': cnt += 1
                if mi % 2 == 1 or not q:
                    if self.can_dma(): self.dma()
                for _ in range(per_gap_extra):
                    if extra: extra.pop(0)()
            assert not q
        for x in extra: x()

    def fbuf(self, j, which):
        nb = self.a.pd + 1
        return A_F + (j % nb) * 16 + which * 4

    def prologue(self):
        e = self.e
        e.i('s_cmp_ge_u32 s2, 256')
        e.i('s_cbranch_scc1 L_end')
        e.i('s_load_dwordx16 s[4:19], s[0:1], 0')
        if self.a.ts:
            e.i(f's_memtime s[{S_TS}:{S_TS+1}]'); self.nts = 1
        e.i(f'v_and_b32 v{V_L}, 63, v0')
        e.i(f'v_lshrrev_b32 v{V_X}, 6, v0')
        e.i(f's_and_b32 s{S_HKV}, s2, 7')
        e.i(f'v_readfirstlane_b32 s{S_W}, v{V_X}')
        e.i(f's_lshr_b32 s{S_T0}, s2, 3')
        e.i(f's_lshr_b32 s{S_B}, s{S_T0}, 2')
        e.i(f's_and_b32 s{S_I}, s{S_T0}, 3')
        e.i(f's_lshr_b32 s{S_T1}, s{S_I}, 1')
        e.i(f's_and_b32 s{S_HALF}, s{S_I}, 1')
        e.i(f's_lshl_b32 s{S_HQ}, s{S_HKV}, 1')
        e.i(f's_add_u32 s{S_HQ}, s{S_HQ}, s{S_T1}')
        e.i(f's_mul_i32 s{S_RING}, s{S_W}, {RINGSZ}')
        e.i(f's_add_u32 s{S_RING}, s{S_RING}, {RING0}')
        for tt in range(4):
            e.i(f's_add_u32 s{S_T0}, s{S_I}, {tt}')
            e.i(f's_and_b32 s{S_T0}, s{S_T0}, 3')
            e.i(f's_lshl_b32 s{S_TILE+tt}, s{S_T0}, 14')
        e.i(f's_mov_b32 s{S_C}, {f32bits(1.4426950408889634/16.0):#x}')
        L = V_L
        rowp, cp, l4, ctr, t0, t1, t2 = V_T, V_T+1, V_T+2, V_T+3, V_T+4, V_T+5, V_T+6
        e.i(f'v_lshrrev_b32 v{rowp}, 3, v{L}')
        e.i(f'v_and_b32 v{cp}, 7, v{L}')
        e.i(f'v_lshrrev_b32 v{l4}, 4, v{L}')
        e.i(f'v_and_b32 v{t0}, 1, v{l4}')
        e.i(f'v_lshlrev_b32 v{t0}, 2, v{t0}')
        e.i(f'v_xor_b32 v{ctr}, v{cp}, v{t0}')
        e.i(f'v_lshlrev_b32 v{ctr}, 4, v{ctr}')
        e.i(f'v_lshl_add_u32 v{V_DWQ}, v{rowp}, 13, v{ctr}')
        for j in range(1, 4):
            e.i(f'v_add_u32 v{V_DWQ+j}, {j*(8*8192-1024)}, v{V_DWQ}')
        cb0, cb1 = V_T+7, V_T+8
        e.i(f'v_xor_b32 v{cb0}, v{cp}, v{l4}')
        e.i(f'v_lshlrev_b32 v{cb0}, 4, v{cb0}')
        e.i(f'v_xor_b32 v{cb1}, 64, v{cb0}')
        e.i(f'v_lshl_add_u32 v{t0}, v{V_X}, 4, v{rowp}')
        e.i(f'v_mul_u32_u24 v{t0}, 896, v{t0}')
        e.i(f'v_add_u32 v{V_X+1}, v{t0}, v{cb0}')
        e.i(f'v_add_u32 v{V_X+2}, v{t0}, v{cb1}')
        e.i(f'v_add_u32 v{V_X+2}, {8*896-1024}, v{V_X+2}')
        e.i('s_waitcnt lgkmcnt(0)')
        def mk(r, base, off_sgpr, nrec):
            e.i(f's_add_u32 s{r}, s{base}, s{off_sgpr}')
            e.i(f's_addc_u32 s{r+1}, s{base+1}, 0')
            if isinstance(nrec, int):
                e.i(f's_mov_b32 s{r+2}, {nrec}')
            else:
                e.i(f's_sub_u32 s{r+2}, {nrec[0]}, s{nrec[1]}')
            e.i(f's_mov_b32 s{r+3}, 0x20000')
        e.i(f's_lshl_b32 s{S_T0}, s{S_B}, 1')
        e.i(f's_add_u32 s{S_T0}, s{S_T0}, s{S_HALF}')
        e.i(f's_mul_i32 s{S_T1}, s{S_T0}, {56*896}')
        mk(R_X, S_X, S_T1, 56*896)
        e.i(f's_lshl_b32 s{S_T1}, s{S_HQ}, 9')
        e.i(f's_lshl_b32 s{S_T2}, s{S_W}, 7')
        e.i(f's_add_u32 s{S_T1}, s{S_T1}, s{S_T2}')
        mk(R_WQ, S_WQ, S_T1, (448*8192, S_T1))
        e.i(f's_lshl_b32 s{S_T3}, s{S_W}, 11')
        self.xtok = []
        nx_first = self.a.xfirst
        def xdma(cb):
            e.i(f's_add_u32 m0, s{S_T3}, {ACT + cb*8192}')
            e.i(f's_mov_b32 s{S_SOFF}, {cb*128}')
            e.vmem(f'buffer_load_dwordx4 v{V_X+1}, {srd(R_X)}, s{S_SOFF} offen lds')
            self.xtok.append(e.vmem(f'buffer_load_dwordx4 v{V_X+2}, {srd(R_X)}, s{S_SOFF} offen offset:1024 lds'))
        for cb in range(7): xdma(cb)
        for _ in range(8): self.dma()
        e.i(f's_lshl_b32 s{S_T1}, s{S_B}, 3')
        e.i(f's_add_u32 s{S_T1}, s{S_T1}, s{S_HKV}')
        e.i(f's_lshl_b32 s{S_T1}, s{S_T1}, 18')
        e.i(f's_add_u32 s{S_T3}, s{S_T1}, s{S_T2}')
        mk(R_V, S_V, S_T3, (262144, S_T2))
        e.i(f's_lshl_b32 s{S_T3}, s{S_W}, 16')
        e.i(f's_add_u32 s{S_T3}, s{S_T3}, s{S_T1}')
        mk(R_K, S_K, S_T3, 65536)
        for _ in range(8): self.dma()
        e.i(f's_mul_i32 s{S_T1}, s{S_HQ}, {256*896}')
        e.i(f's_add_u32 s{S_T1}, s{S_T1}, s{S_T2}')
        mk(R_WO0, S_WO, S_T1, (256*896, S_T2))
        e.i(f's_add_u32 s{S_T1}, s{S_T1}, 512')
        e.i(f's_add_u32 s{S_T3}, s{S_T2}, 512')
        mk(R_WO1, S_WO, S_T1, (256*896, S_T3))
        e.i(f's_cmp_lt_u32 s{S_W}, 3')
        e.i(f's_cselect_b32 s{R_WO1+2}, s{R_WO1+2}, 0')
        e.i(f's_mul_i32 s{S_T1}, s{S_T0}, {56*16}')
        e.i(f's_add_u32 s{S_T1}, s{S_T1}, s{S_HQ}')
        e.i(f's_lshl_b32 s{S_T1}, s{S_T1}, 10')
        e.i(f's_lshl_b32 s{S_T3}, s{S_W}, 17')
        e.i(f's_add_u32 s{S_T1}, s{S_T1}, s{S_T3}')
        mk(R_P0, S_WS, S_T1, 8*16384)
        e.i(f's_add_u32 s{S_T1}, s{S_T1}, {4*8*16384}')
        mk(R_P1, S_WS, S_T1, 8*16384)
        e.i(f's_cmp_lt_u32 s{S_W}, 3')
        e.i(f's_cselect_b32 s{R_P1+2}, s{R_P1+2}, 0')
        for _ in range(8): self.dma()
        e.i(f'v_lshlrev_b32 v{t0}, 9, v{rowp}')
        e.i(f'v_add_u32 v{V_DK}, v{t0}, v{cb0}')
        e.i(f'v_add_u32 v{V_DK+1}, v{t0}, v{cb1}')
        e.i(f'v_add_u32 v{V_DK+2}, {2*3072}, v{V_DK}')
        e.i(f'v_add_u32 v{V_DK+3}, {3*3072}, v{V_DK+1}')
        e.i(f'v_add_u32 v{V_DK+1}, 3072, v{V_DK+1}')
        e.i(f'v_add_u32 v{V_DV}, v{t0}, v{ctr}')
        for j in range(1, 4):
            e.i(f'v_add_u32 v{V_DV+j}, {3072*j}, v{V_DV}')
        e.i(f'v_mul_u32_u24 v{t0}, 896, v{rowp}')
        e.i(f'v_add_u32 v{V_DWO}, v{t0}, v{ctr}')
        for j in range(1, 4):
            e.i(f'v_add_u32 v{V_DWO+j}, {6144*j}, v{V_DWO}')
        lo, hi = V_T+9, V_T+10
        e.i(f'v_and_b32 v{lo}, 31, v{L}')
        e.i(f'v_lshrrev_b32 v{hi}, 5, v{L}')
        e.i(f'v_bfe_u32 v{t0}, v{lo}, 1, 3')
        e.i(f'v_xor_b32 v{t0}, v{t0}, v{hi}')
        e.i(f'v_lshlrev_b32 v{t0}, 4, v{t0}')
        e.i(f'v_lshl_add_u32 v{V_AB}, v{lo}, 7, v{t0}')
        for s in range(1, 4):
            e.i(f'v_xor_b32 v{V_AB+s}, {32*s}, v{V_AB}')
        g1, r_, c4 = V_T+11, V_T+12, V_T+13
        e.i(f'v_bfe_u32 v{g1}, v{L}, 4, 1')
        e.i(f'v_bfe_u32 v{r_}, v{L}, 2, 2')
        e.i(f'v_and_b32 v{c4}, 3, v{L}')
        e.i(f'v_lshrrev_b32 v{t0}, 1, v{r_}')
        e.i(f'v_lshlrev_b32 v{t0}, 6, v{t0}')
        e.i(f'v_lshl_add_u32 v{t0}, v{g1}, 5, v{t0}')
        e.i(f'v_lshl_add_u32 v{t0}, v{r_}, 7, v{t0}')
        e.i(f'v_add_u32 v{t0}, s{S_RING}, v{t0}')
        e.i(f'v_and_b32 v{t1}, 1, v{c4}')
        e.i(f'v_lshlrev_b32 v{t1}, 4, v{t1}')
        e.i(f'v_lshrrev_b32 v{t2}, 1, v{c4}')
        e.i(f'v_lshl_add_u32 v{t1}, v{t2}, 3, v{t1}')
        e.i(f'v_add_u32 v{t1}, v{t1}, v{t0}')
        e.i(f'v_lshl_add_u32 v{t2}, v{c4}, 3, v{t0}')
        e.i(f'v_lshl_add_u32 v{V_TRQ}, v{hi}, 10, v{t1}')
        e.i(f'v_lshl_add_u32 v{V_TRV}, v{hi}, 9, v{t2}')
        e.i(f'v_lshl_add_u32 v{V_TRO}, v{hi}, 9, v{t1}')
        for r in (V_TRQ, V_TRV, V_TRO):
            e.i(f'v_xor_b32 v{r+1}, 64, v{r}')
        e.i(f'v_lshlrev_b32 v{V_LIN}, 4, v{L}')
        e.i(f'v_lshl_add_u32 v{V_LINW}, v{V_X}, 14, v{V_LIN}')
        e.i(f'v_lshlrev_b32 v{t0}, 2, v{L}')
        e.i(f'v_lshl_add_u32 v{V_STW}, v{V_X}, 8, v{t0}')
        e.i(f'v_lshlrev_b32 v{t0}, 2, v{lo}')
        e.i(f'v_lshl_add_u32 v{V_STR}, v{V_X}, 14, v{t0}')
        e.i(f'v_add_u32 v{V_SUMR}, {15*1024+384}, v{t0}')
        e.i(f'v_lshl_add_u32 v{V_SUMW}, v{hi}, 9, v{V_SUMR}')
        e.i(f'v_lshl_add_u32 v{V_SUMW}, v{V_X}, 14, v{V_SUMW}')
        e.i(f'v_mov_b32 v{V_SO0}, v{V_LIN}')
        e.i(f'v_cmp_gt_u32 vcc, 24, v{lo}')
        e.i(f'v_mov_b32 v{t0}, 0x40000000')
        e.i('s_nop 1')
        e.i(f'v_cndmask_b32 v{V_SO1}, v{t0}, v{V_LIN}, vcc')
        e.wait(vm=self.xtok[-1])
        e.i('s_barrier')

    def write_frags(self, acc, scale=None):
        e = self.e
        k = 0
        for t in range(2):
            for mt in range(2):
                base = acc + (t*2+mt)*16
                for s in range(2):
                    tmp = V_T + (k % 4) * 4; k += 1
                    for d in range(4):
                        a = base + 8*s + 2*d
                        if scale is not None:
                            e.i(f'v_mul_f32 v{a}, v{a}, v{scale+mt}')
                            e.i(f'v_mul_f32 v{a+1}, v{a+1}, v{scale+mt}')
                        e.i(f'v_cvt_pk_bf16_f32 v{tmp+d}, v{a}, v{a+1}')
                    e.lds(f'ds_write_b128 v{V_LINW}, {vr(tmp,4)} offset:{8192 + ((2*t+s)*2+mt)*1024}')
                    if self.can_dma(): self.dma()

    def read_bfrags(self):
        e = self.e
        toks = {}
        for kk in range(16):
            for mt in range(2):
                off = (kk >> 2) * 16384 + 8192 + ((kk & 3) * 2 + mt) * 1024
                toks[(kk, mt)] = e.lds(f'ds_read_b128 {ar(A_B + (kk*2+mt)*4, 4)}, v{V_LIN} offset:{off}')
        return toks

    def dump_act(self):
        e = self.e
        e.wait_vm_all(); e.wait_lg_all()
        e.i('s_barrier')
        e.i(f's_lshl_b32 s{S_T0}, s2, 16')
        e.i(f's_add_u32 s{S_T0}, s{S_T0}, {64<<20}')
        e.i(f's_add_u32 s{R_DBG}, s{S_WS}, s{S_T0}')
        e.i(f's_addc_u32 s{R_DBG+1}, s{S_WS+1}, 0')
        e.i(f's_mov_b32 s{R_DBG+2}, 65536')
        e.i(f's_mov_b32 s{R_DBG+3}, 0x20000')
        for k in range(16):
            e.i(f'ds_read_b128 {vr(V_T,4)}, v{V_LINW} offset:{k*1024}')
            e.i('s_waitcnt lgkmcnt(0)')
            e.i(f's_mov_b32 s{S_T0}, {k*1024}')
            e.i(f'buffer_store_dwordx4 {vr(V_T,4)}, v{V_LINW}, {srd(R_DBG)}, s{S_T0} offen')
            e.i('s_waitcnt vmcnt(0)')
        e.i('s_endpgm')

    def tr_steps(self, G0, nsteps, vtr, ustride, acc, bsrc, j0=0):
        steps = []
        for kk in range(nsteps):
            G = G0 + kk // 2
            base = self.slot_off(G) + (kk & 1) * 2048
            j = j0 + kk
            reads = []; idx = {}
            def addA(t):
                for u in range(2):
                    idx[('A', t, u)] = len(reads)
                    reads.append(f'ds_read_b64_tr_b16 {ar(self.fbuf(j, t) + 2*u, 2)}, v{vtr+t} offset:{base + u*ustride}')
            breg = {}
            def addB(mt):
                b = bsrc(kk, mt)
                if b[0] == 'reg':
                    breg[mt] = b[1]
                else:
                    idx[('B', mt)] = len(reads)
                    breg[mt] = ar(self.fbuf(j, 2 + mt), 4)
                    reads.append(f'ds_read_b128 {breg[mt]}, v{b[1]} offset:{b[2]}')
            addA(0); addB(0); addB(1); addA(1)
            mf = []
            for (t, mt) in ((0, 0), (0, 1), (1, 0), (1, 1)):
                d = vr(acc + (t*2+mt)*16, 16)
                c = '0' if kk == 0 else d
                deps = [idx[('A', t, 0)], idx[('A', t, 1)]]
                if ('B', mt) in idx: deps.append(idx[('B', mt)])
                mf.append((f'v_mfma_f32_32x32x16_bf16 {d}, {ar(self.fbuf(j, t), 4)}, {breg[mt]}, {c}', deps))
            p = 4*G + (kk & 1)*2
            steps.append(dict(reads=reads, need=p+1, free=p+2, mfmas=mf))
        return steps

    def main(self):
        e = self.e; a = self.a
        self.prologue()
        self.ts()
        e.c('phase 1')
        steps = self.tr_steps(0, 28, V_TRQ, 512, V_O,
                              lambda kk, mt: ('lds', V_AB + (kk & 3), ACT + (kk >> 2)*8192 + mt*4096))
        self.gemm(steps)
        self.ts()
        e.i('s_barrier')
        e.i('s_nop 7'); e.i('s_nop 3')
        for s in range(4):
            e.i(f'v_add_u32 v{V_AB+s}, s{S_RING}, v{V_AB+s}')
        self.write_frags(V_O)
        e.wait_lg_all()
        e.i('s_barrier')
        if a.stop == 1: return self.dump_act()
        self.read_bfrags()
        e.wait_lg_all()
        self.ts()
        e.c('phase 2')
        steps = []
        j = 0
        for tt in range(4):
            for cb in range(4):
                G = 14 + tt*4 + cb
                for half in range(2):
                    reads = []; mf = []
                    for ss in range(2):
                        s = half*2 + ss
                        KK = cb*4 + s
                        fb = ar(self.fbuf(j, ss), 4)
                        reads.append(f'ds_read_b128 {fb}, v{V_AB+s} offset:{self.slot_off(G)}')
                        for mt in range(2):
                            d = vr(V_S + (tt*2+mt)*16, 16)
                            c = '0' if KK == 0 else d
                            mf.append((f'v_mfma_f32_32x32x16_bf16 {d}, {fb}, {ar(A_B + (KK*2+mt)*4, 4)}, {c}', [ss]))
                    steps.append(dict(reads=reads, need=4*G+3, free=(4*G+4 if half == 1 else 4*G), mfmas=mf))
                    j += 1
        self.gemm(steps)
        self.ts()
        e.c('softmax')
        e.i('s_nop 7'); e.i('s_nop 3')
        for mt in range(2):
            regs = [V_S + (tt*2+mt)*16 + r for tt in range(4) for r in range(16)]
            e.i(f'v_max3_f32 v{V_MX+mt}, v{regs[0]}, v{regs[1]}, v{regs[2]}')
            e.i(f'v_max3_f32 v{V_T+mt}, v{regs[3]}, v{regs[4]}, v{regs[5]}')
            k = 6; flip = 0
            while k < 64:
                tgt = V_MX+mt if flip == 0 else V_T+mt
                e.i(f'v_max3_f32 v{tgt}, v{regs[k]}, v{regs[k+1]}, v{tgt}')
                k += 2; flip ^= 1
            e.i(f'v_max_f32 v{V_MX+mt}, v{V_MX+mt}, v{V_T+mt}')
        e.i('s_nop 1')
        e.i(f'v_permlane32_swap_b32 v{V_MX}, v{V_MX+1}')
        e.i('s_nop 1')
        e.i(f'v_max_f32 v{V_MX}, v{V_MX}, v{V_MX+1}')
        for y in range(4):
            e.lds(f'ds_write_b32 v{V_STW}, v{V_MX} offset:{y*16384}')
        e.wait_lg_all()
        e.i('s_barrier')
        for x in range(4):
            e.lds(f'ds_read2_b32 {vr(V_T+2*x,2)}, v{V_STR} offset0:{x*64} offset1:{x*64+32}')
        e.wait_lg_all()
        for mt in range(2):
            e.i(f'v_max3_f32 v{V_MX+mt}, v{V_T+mt}, v{V_T+2+mt}, v{V_T+4+mt}')
            e.i(f'v_max_f32 v{V_MX+mt}, v{V_MX+mt}, v{V_T+6+mt}')
            e.i(f'v_mul_f32 v{V_NM+mt}, s{S_C}, v{V_MX+mt}')
            e.i(f'v_mov_b32 v{V_SUM+mt}, 0')
        k = 0
        for tt in range(4):
            for s in range(2):
                for mt in range(2):
                    base = V_S + (tt*2+mt)*16 + 8*s
                    tmp = V_T + (k % 4)*4; k += 1
                    for r in range(8):
                        e.i(f'v_fma_f32 v{base+r}, v{base+r}, s{S_C}, -v{V_NM+mt}')
                    for r in range(8):
                        e.i(f'v_exp_f32 v{base+r}, v{base+r}')
                    for d in range(4):
                        e.i(f'v_cvt_pk_bf16_f32 v{tmp+d}, v{base+2*d}, v{base+2*d+1}')
                    e.lds(f'ds_write_b128 v{V_LINW}, {vr(tmp,4)} offset:{((tt*2+s)*2+mt)*1024}')
                    for d in range(4):
                        e.i(f'v_add_f32 v{base+2*d}, v{base+2*d}, v{base+2*d+1}')
                    e.i(f'v_add_f32 v{base}, v{base}, v{base+2}')
                    e.i(f'v_add_f32 v{base+4}, v{base+4}, v{base+6}')
                    e.i(f'v_add_f32 v{base}, v{base}, v{base+4}')
                    e.i(f'v_add_f32 v{V_SUM+mt}, v{V_SUM+mt}, v{base}')
                    if self.can_dma(): self.dma()
        e.i('s_nop 1')
        e.i(f'v_permlane32_swap_b32 v{V_SUM}, v{V_SUM+1}')
        e.i('s_nop 1')
        e.i(f'v_add_f32 v{V_SUM}, v{V_SUM}, v{V_SUM+1}')
        e.lds(f'ds_write_b32 v{V_SUMW}, v{V_SUM}')
        e.wait_lg_all()
        e.i('s_barrier')
        if a.stop == 2: return self.dump_act()
        for x in range(4):
            e.lds(f'ds_read_b32 v{V_X+x if x<3 else V_T}, v{V_SUMR} offset:{x*16384}')
            e.lds(f'ds_read_b32 v{V_X+3+x if x<3 else V_T+1}, v{V_SUMR} offset:{x*16384+512}')
        e.wait_lg_all()
        for mt in range(2):
            b = V_X + 3*mt
            e.i(f'v_add_f32 v{b}, v{b}, v{b+1}')
            e.i(f'v_add_f32 v{b+2}, v{b+2}, v{V_T+mt}')
            e.i(f'v_add_f32 v{b}, v{b}, v{b+2}')
            e.i(f'v_rcp_f32 v{V_SUM+mt}, v{b}')
        self.ts()
        e.c('phase 3')
        def psrc(kk, mt):
            tt, wp, s = kk >> 3, (kk >> 1) & 3, kk & 1
            return ('lds', V_LIN, wp*16384 + ((tt*2+s)*2+mt)*1024)
        steps = self.tr_steps(30, 32, V_TRV, 1024, V_O, psrc)
        self.gemm(steps)
        self.ts()
        e.i('s_barrier')
        e.i('s_nop 7'); e.i('s_nop 3')
        self.write_frags(V_O, scale=V_SUM)
        e.wait_lg_all()
        e.i('s_barrier')
        if a.stop == 3: return self.dump_act()
        self.read_bfrags()
        e.wait_lg_all()
        self.ts()
        e.c('phase 4')
        osrc = lambda kk, mt: ('reg', ar(A_B + (kk*2+mt)*4, 4))
        def store_ops(ps):
            ops = []
            acc = V_S + ps*64
            R = R_P0 if ps == 0 else R_P1
            k = 0
            for t in range(2):
                for mt in range(2):
                    for s in range(2):
                        tmp = V_T + (k % 4)*4; k += 1
                        b = acc + (t*2+mt)*16 + 8*s
                        for d in range(4):
                            ops.append(lambda tmp=tmp, d=d, b=b: e.i(f'v_cvt_pk_bf16_f32 v{tmp+d}, v{b+2*d}, v{b+2*d+1}'))
                        f = (t*2+mt)*2 + s
                        def st(tmp=tmp, f=f, mt=mt, R=R):
                            e.i(f's_mov_b32 s{S_ST}, {f*16384}')
                            e.vmem(f'buffer_store_dwordx4 {vr(tmp,4)}, v{V_SO0+mt}, {srd(R)}, s{S_ST} offen{a.stflags}')
                        ops.append(st)
            return ops
        s0 = self.tr_steps(46, 16, V_TRO, 1024, V_S, osrc)
        s1 = self.tr_steps(54, 16, V_TRO, 1024, V_S + 64, osrc, j0=16)
        nop = lambda: None
        extra = [nop]*(16*4 + 8) + store_ops(0)
        self.gemm(s0 + s1, extra=extra, per_gap_extra=1)
        self.ts()
        e.i('s_nop 7'); e.i('s_nop 3')
        for op in store_ops(1): op()
        if a.ts:
            e.wait_vm_all()
            self.ts()
            e.i(f's_lshl_b32 s{S_T0}, s2, 2')
            e.i(f's_add_u32 s{S_T0}, s{S_T0}, s{S_W}')
            e.i(f's_lshl_b32 s{S_T0}, s{S_T0}, 7')
            e.i(f's_add_u32 s{S_T0}, s{S_T0}, {128<<20}')
            e.i(f's_add_u32 s{R_DBG}, s{S_WS}, s{S_T0}')
            e.i(f's_addc_u32 s{R_DBG+1}, s{S_WS+1}, 0')
            e.i(f's_mov_b32 s{R_DBG+2}, 128')
            e.i(f's_mov_b32 s{R_DBG+3}, 0x20000')
            e.i(f'v_mov_b32 v{V_T+1}, 0')
            for k in range(self.nts):
                e.i(f'v_mov_b32 v{V_T}, s{S_TS+2*k}')
                e.i(f'buffer_store_dword v{V_T}, v{V_T+1}, {srd(R_DBG)}, 0 offen offset:{4*k}')
                e.i('s_nop 1')
            e.i(f's_memrealtime s[{S_TS}:{S_TS+1}]')
            e.i('s_waitcnt lgkmcnt(0)')
            e.i(f'v_mov_b32 v{V_T}, s{S_TS}')
            e.i(f'buffer_store_dword v{V_T}, v{V_T+1}, {srd(R_DBG)}, 0 offen offset:{4*15}')

def reduce_kernel():
    o = []
    i = lambda s: o.append('    ' + s)
    i('s_cmp_ge_u32 s2, 224')
    i('s_cbranch_scc1 L_rend')
    i('s_load_dwordx2 s[4:5], s[0:1], 40')
    i('s_load_dwordx2 s[6:7], s[0:1], 56')
    i('s_mul_i32 s8, s2, 4682')
    i('s_lshr_b32 s8, s8, 16')
    i('s_mul_i32 s9, s8, 14')
    i('s_sub_u32 s9, s2, s9')
    i('v_lshrrev_b32 v1, 6, v0')
    i('v_and_b32 v2, 63, v0')
    i('v_lshlrev_b32 v3, 14, v1')
    i('v_lshl_add_u32 v3, v2, 4, v3')
    i('v_and_b32 v4, 31, v0')
    i('v_bfe_u32 v5, v0, 5, 1')
    i('v_bfe_u32 v6, v0, 6, 1')
    i('v_lshrrev_b32 v7, 7, v0')
    i('v_lshl_add_u32 v8, v7, 5, v4')
    i('v_cmp_gt_u32 vcc, 56, v8')
    i('v_mov_b32 v9, 0x40000000')
    i('v_mul_u32_u24 v10, 896, v8')
    i('v_lshl_add_u32 v10, v6, 5, v10')
    i('v_lshl_add_u32 v10, v5, 4, v10')
    i('v_cndmask_b32 v3, v9, v3, vcc')
    i('v_cndmask_b32 v10, v9, v10, vcc')
    i('v_add_u32 v11, 4096, v3')
    i('v_add_u32 v12, 8192, v3')
    i('v_add_u32 v13, 12288, v3')
    i('s_waitcnt lgkmcnt(0)')
    i('s_lshl_b32 s10, s2, 16')
    i('s_add_u32 s12, s6, s10')
    i('s_addc_u32 s13, s7, 0')
    i('s_mov_b32 s14, 65536')
    i('s_mov_b32 s15, 0x20000')
    av = [3, 11, 12, 13]
    for h in range(16):
        off = f' offset:{(h&3)*1024}' if h & 3 else ''
        i(f'buffer_load_dwordx4 v[{16+4*h}:{19+4*h}], v{av[h>>2]}, s[12:15], 0 offen{off}')
    i(f's_mul_i32 s10, s8, {56*896}')
    i('s_lshl_b32 s11, s9, 6')
    i('s_add_u32 s10, s10, s11')
    i('s_add_u32 s16, s4, s10')
    i('s_addc_u32 s17, s5, 0')
    i(f's_sub_u32 s18, {896*896}, s10')
    i('s_mov_b32 s19, 0x20000')
    i('s_mov_b32 s20, 0xffff0000')
    for h in range(16):
        i(f's_waitcnt vmcnt({15-h})')
        for d in range(4):
            src = 16 + 4*h + d
            if h == 0:
                i(f'v_lshlrev_b32 v{80+2*d}, 16, v{src}')
                i(f'v_and_b32 v{81+2*d}, s20, v{src}')
            else:
                i(f'v_lshlrev_b32 v{88+2*d}, 16, v{src}')
                i(f'v_and_b32 v{89+2*d}, s20, v{src}')
                i(f'v_add_f32 v{80+2*d}, v{80+2*d}, v{88+2*d}')
                i(f'v_add_f32 v{81+2*d}, v{81+2*d}, v{89+2*d}')
    for d in range(4):
        i(f'v_cvt_pk_bf16_f32 v{88+d}, v{80+2*d}, v{81+2*d}')
    i('buffer_store_dwordx4 v[88:91], v10, s[16:19], 0 offen')
    o.append('L_rend:')
    i('s_endpgm')
    return o

HEADER = """; GQA block (Q-proj + attention + O-proj partials) followed by a head reduction.
; @launch kernel=gqa_main_kernel grid=(256,1,1) block=(256,1,1) lds=163840
; @launch kernel=gqa_reduce_kernel grid=(224,1,1) block=(256,1,1) lds=0
.amdgcn_target "amdgcn-amd-amdhsa--gfx950"
.text
"""

def kd(name, vgpr, sgpr, accum):
    return f""".p2align 6
.amdhsa_kernel {name}
  .amdhsa_next_free_vgpr {vgpr}
  .amdhsa_next_free_sgpr {sgpr}
  .amdhsa_accum_offset {accum}
  .amdhsa_group_segment_fixed_size 0
  .amdhsa_kernarg_size 64
  .amdhsa_user_sgpr_count 2
  .amdhsa_user_sgpr_kernarg_segment_ptr 1
  .amdhsa_system_sgpr_workgroup_id_x 1
.end_amdhsa_kernel
"""

def fn(name):
    return f".globl {name}\n.p2align 8\n.type {name},@function\n{name}:\n"

def build(args):
    g = Gen(args)
    g.main()
    s = HEADER
    s += fn('gqa_main_kernel') + '\n'.join(g.e.out) + '\nL_end:\n    s_endpgm\n'
    s += fn('gqa_reduce_kernel') + '\n'.join(reduce_kernel()) + '\n'
    s += '.section .rodata,"a"\n'
    s += kd('gqa_main_kernel', 512, 102, 256)
    s += kd('gqa_reduce_kernel', 96, 32, 96)
    return s

if __name__ == '__main__':
    p = argparse.ArgumentParser()
    p.add_argument('-o', default=f'cdna_kernels/{NAME}.s')
    p.add_argument('--pd', type=int, default=2)
    p.add_argument('--ts', action='store_true')
    p.add_argument('--stop', type=int, default=0)
    p.add_argument('--nomfma', action='store_true')
    p.add_argument('--xfirst', type=int, default=7)
    p.add_argument('--stflags', default='')
    args = p.parse_args()
    if args.stflags: args.stflags = ' ' + args.stflags
    open(args.o, 'w').write(build(args))
```

```python
import sys, struct, argparse

NAME = "standalone__gqa_block_cached__near_ridge"

def f32bits(x):
    return struct.unpack('<I', struct.pack('<f', x))[0]

class E:
    def __init__(self):
        self.out = []
        self.vm = 0; self.vmd = 0
        self.lg = 0; self.lgd = 0
    def raw(self, s): self.out.append(s)
    def i(self, s): self.out.append('    ' + s)
    def c(self, s): self.out.append('    ; ' + s)
    def vmem(self, s):
        self.i(s); self.vm += 1; return self.vm - 1
    def lds(self, s):
        self.i(s); self.lg += 1; return self.lg - 1
    def wait(self, vm=None, lg=None):
        parts = []
        if vm is not None and vm >= self.vmd:
            n = min(self.vm - (vm + 1), 63)
            parts.append(f'vmcnt({n})'); self.vmd = self.vm - n
        if lg is not None and lg >= self.lgd:
            n = min(self.lg - (lg + 1), 15)
            parts.append(f'lgkmcnt({n})'); self.lgd = self.lg - n
        if parts:
            self.i('s_waitcnt ' + ' '.join(parts))
    def wait_lg_all(self):
        self.i('s_waitcnt lgkmcnt(0)'); self.lgd = self.lg
    def wait_vm_all(self):
        self.i('s_waitcnt vmcnt(0)'); self.vmd = self.vm

S_X, S_K, S_V, S_WQ, S_WO, S_OUT, S_DBG, S_WS = 4, 6, 8, 10, 12, 14, 16, 18
R_X, R_K, R_V, R_WQ, R_WO0, R_WO1, R_P0, R_P1 = 20, 24, 28, 32, 36, 40, 44, 48
S_W = 52
S_RING = 53
S_TILE = 54
S_SOFF = 58
S_T0, S_T1, S_T2, S_T3 = 59, 60, 61, 62
S_C = 63
S_B, S_HKV, S_I, S_HQ, S_HALF = 64, 65, 66, 67, 68
S_ST = 69
R_DBG = 72
S_TS = 76
V_S = 0
V_O = 128
V_T = 192
V_DWQ, V_DK, V_DV, V_DWO = 208, 212, 216, 220
V_AB = 224
V_TRQ, V_TRV, V_TRO = 228, 230, 232
V_LIN = 234
V_LINW = 235
V_STW = 236
V_STR = 237
V_MX = 238
V_SUM = 240
V_NM = 242
V_SO0, V_SO1 = 244, 245
V_SUMW = 246
V_SUMR = 247
V_L = 248
V_X = 249
A_B = 0
A_F = 128

ACT = 0
RING0 = 65536
RINGSZ = 24576
NSLOT = 24

def srd(r): return f's[{r}:{r+3}]'
def vr(a, n): return f'v[{a}:{a+n-1}]'
def ar(a, n): return f'a[{a}:{a+n-1}]'

class Gen:
    def __init__(self, args):
        self.a = args
        self.e = E()
        self.nts = 0
        self.groups = []
        for g in range(14):
            self.groups.append((R_WQ, V_DWQ, ('imm', g * 262144)))
        for tt in range(4):
            for cb in range(4):
                self.groups.append((R_K, V_DK, ('add', S_TILE + tt, cb * 128)))
        for tt in range(4):
            for wp in range(4):
                self.groups.append((R_V, V_DV, ('add', S_TILE + tt, wp * 65536)))
        for ps in range(2):
            for g in range(8):
                self.groups.append((R_WO0 if ps == 0 else R_WO1, V_DWO, ('imm', g * 28672)))
        self.npieces = 4 * len(self.groups)
        self.nxt = 0
        self.freed = 0
        self.ptok = {}

    def ts(self):
        if not self.a.ts: return
        if self.nts >= 12: return
        e = self.e
        e.wait_lg_all()
        e.i(f's_memtime s[{S_TS+2*self.nts}:{S_TS+2*self.nts+1}]')
        e.i('s_waitcnt lgkmcnt(0)')
        self.nts += 1

    def ts0(self):
        if not self.a.ts or not self.a.tsp: return
        self.e.i(f's_memtime s[{S_TS+2*self.nts}:{S_TS+2*self.nts+1}]')
        self.nts += 1

    def can_dma(self):
        return self.nxt < self.npieces and self.nxt < self.freed + NSLOT

    def dma(self):
        e = self.e
        p = self.nxt
        G, j = divmod(p, 4)
        r, vb, so = self.groups[G]
        if j == 0:
            slot = G % (NSLOT // 4)
            e.i(f's_add_u32 m0, s{S_RING}, {slot*4096}')
            if so[0] == 'imm':
                e.i(f's_mov_b32 s{S_SOFF}, {so[1]}')
            else:
                e.i(f's_add_u32 s{S_SOFF}, s{so[1]}, {so[2]}')
        off = f' offset:{1024*j}' if j else ''
        self.ptok[p] = e.vmem(f'buffer_load_dwordx4 v{vb+j}, {srd(r)}, s{S_SOFF} offen{off}{self.a.kvflags if r in (R_K, R_V) else self.a.ldflags} lds')
        self.nxt += 1

    def slot_off(self, G):
        return (G % (NSLOT // 4)) * 4096

    def gemm(self, steps, extra=None, per_gap_extra=0):
        e = self.e
        PD = self.a.pd
        n = len(steps)
        extra = list(extra or [])
        def issue_reads_list(st):
            l = []
            if st['need'] is not None:
                l.append(('vm', st['need']))
            for k, t in enumerate(st['reads']):
                l.append(('rd', st, k, t))
            return l
        def do(item):
            if item[0] == 'vm':
                assert item[1] in self.ptok, (item, self.nxt, self.freed)
                e.wait(vm=self.ptok[item[1]])
            else:
                _, st, k, t = item
                st.setdefault('tok', {})[k] = e.lds(t)
        for j in range(min(PD, n)):
            for it in issue_reads_list(steps[j]): do(it)
        for j in range(n):
            st = steps[j]
            q = issue_reads_list(steps[j + PD]) if j + PD < n else []
            nm = len(st['mfmas'])
            nrd = sum(1 for x in q if x[0] == 'rd')
            per = -(-nrd // nm) if nm else nrd
            for mi, (t, deps) in enumerate(st['mfmas']):
                if deps:
                    e.wait(lg=max(st['tok'][d] for d in deps))
                if not self.a.nomfma:
                    e.i(t)
                if st['reads'] and e.lgd > max(st['tok'].values()):
                    self.freed = max(self.freed, st['free'])
                cnt = 0
                while q and cnt < per:
                    it = q.pop(0)
                    do(it)
                    if it[0] == 'rd': cnt += 1
                if mi % 2 == 1 or not q:
                    if self.can_dma(): self.dma()
                for _ in range(per_gap_extra):
                    if extra: extra.pop(0)()
            assert not q
        for x in extra: x()

    def fbuf(self, j, which):
        nb = self.a.pd + 1
        return A_F + (j % nb) * 16 + which * 4

    def prologue(self):
        e = self.e
        e.i('s_cmp_ge_u32 s2, 256')
        e.i('s_cbranch_scc1 L_end')
        e.i('s_load_dwordx16 s[4:19], s[0:1], 0')
        if self.a.ts:
            e.i(f's_memtime s[{S_TS}:{S_TS+1}]'); self.nts = 1
        e.i(f'v_and_b32 v{V_L}, 63, v0')
        e.i(f'v_lshrrev_b32 v{V_X}, 6, v0')
        e.i(f's_and_b32 s{S_HKV}, s2, 7')
        e.i(f'v_readfirstlane_b32 s{S_W}, v{V_X}')
        e.i(f's_lshr_b32 s{S_T0}, s2, 3')
        e.i(f's_lshr_b32 s{S_B}, s{S_T0}, 2')
        e.i(f's_and_b32 s{S_I}, s{S_T0}, 3')
        e.i(f's_lshr_b32 s{S_T1}, s{S_I}, 1')
        e.i(f's_and_b32 s{S_HALF}, s{S_I}, 1')
        e.i(f's_lshl_b32 s{S_HQ}, s{S_HKV}, 1')
        e.i(f's_add_u32 s{S_HQ}, s{S_HQ}, s{S_T1}')
        e.i(f's_mul_i32 s{S_RING}, s{S_W}, {RINGSZ}')
        e.i(f's_add_u32 s{S_RING}, s{S_RING}, {RING0}')
        for tt in range(4):
            e.i(f's_add_u32 s{S_T0}, s{S_I}, {tt}')
            e.i(f's_and_b32 s{S_T0}, s{S_T0}, 3')
            e.i(f's_lshl_b32 s{S_TILE+tt}, s{S_T0}, 14')
        e.i(f's_mov_b32 s{S_C}, {f32bits(1.4426950408889634/16.0):#x}')
        L = V_L
        rowp, cp, l4, ctr, t0, t1, t2 = V_T, V_T+1, V_T+2, V_T+3, V_T+4, V_T+5, V_T+6
        e.i(f'v_lshrrev_b32 v{rowp}, 3, v{L}')
        e.i(f'v_and_b32 v{cp}, 7, v{L}')
        e.i(f'v_lshrrev_b32 v{l4}, 4, v{L}')
        e.i(f'v_and_b32 v{t0}, 1, v{l4}')
        e.i(f'v_lshlrev_b32 v{t0}, 2, v{t0}')
        e.i(f'v_xor_b32 v{ctr}, v{cp}, v{t0}')
        e.i(f'v_lshlrev_b32 v{ctr}, 4, v{ctr}')
        e.i(f'v_lshl_add_u32 v{V_DWQ}, v{rowp}, 13, v{ctr}')
        for j in range(1, 4):
            e.i(f'v_add_u32 v{V_DWQ+j}, {j*(8*8192-1024)}, v{V_DWQ}')
        cb0, cb1 = V_T+7, V_T+8
        e.i(f'v_xor_b32 v{cb0}, v{cp}, v{l4}')
        e.i(f'v_lshlrev_b32 v{cb0}, 4, v{cb0}')
        e.i(f'v_xor_b32 v{cb1}, 64, v{cb0}')
        e.i(f'v_lshl_add_u32 v{t0}, v{V_X}, 4, v{rowp}')
        e.i(f'v_mul_u32_u24 v{t0}, 896, v{t0}')
        e.i(f'v_add_u32 v{V_X+1}, v{t0}, v{cb0}')
        e.i(f'v_add_u32 v{V_X+2}, v{t0}, v{cb1}')
        e.i(f'v_add_u32 v{V_X+2}, {8*896-1024}, v{V_X+2}')
        e.i('s_waitcnt lgkmcnt(0)')
        self.ts0()
        def mk(r, base, off_sgpr, nrec):
            e.i(f's_add_u32 s{r}, s{base}, s{off_sgpr}')
            e.i(f's_addc_u32 s{r+1}, s{base+1}, 0')
            if isinstance(nrec, int):
                e.i(f's_mov_b32 s{r+2}, {nrec}')
            else:
                e.i(f's_sub_u32 s{r+2}, {nrec[0]}, s{nrec[1]}')
            e.i(f's_mov_b32 s{r+3}, 0x20000')
        e.i(f's_lshl_b32 s{S_T0}, s{S_B}, 1')
        e.i(f's_add_u32 s{S_T0}, s{S_T0}, s{S_HALF}')
        e.i(f's_mul_i32 s{S_T1}, s{S_T0}, {56*896}')
        mk(R_X, S_X, S_T1, 56*896)
        e.i(f's_lshl_b32 s{S_T1}, s{S_HQ}, 9')
        e.i(f's_lshl_b32 s{S_T2}, s{S_W}, 7')
        e.i(f's_add_u32 s{S_T1}, s{S_T1}, s{S_T2}')
        mk(R_WQ, S_WQ, S_T1, (448*8192, S_T1))
        e.i(f's_lshl_b32 s{S_T3}, s{S_W}, 11')
        self.xtok = []
        nx_first = self.a.xfirst
        def xdma(cb):
            e.i(f's_add_u32 m0, s{S_T3}, {ACT + cb*8192}')
            e.i(f's_mov_b32 s{S_SOFF}, {cb*128}')
            e.vmem(f'buffer_load_dwordx4 v{V_X+1}, {srd(R_X)}, s{S_SOFF} offen{self.a.xflags} lds')
            self.xtok.append(e.vmem(f'buffer_load_dwordx4 v{V_X+2}, {srd(R_X)}, s{S_SOFF} offen offset:1024{self.a.xflags} lds'))
        for cb in range(7): xdma(cb)
        self.ts0()
        for _ in range(8): self.dma()
        e.i(f's_lshl_b32 s{S_T1}, s{S_B}, 3')
        e.i(f's_add_u32 s{S_T1}, s{S_T1}, s{S_HKV}')
        e.i(f's_lshl_b32 s{S_T1}, s{S_T1}, 18')
        e.i(f's_add_u32 s{S_T3}, s{S_T1}, s{S_T2}')
        mk(R_V, S_V, S_T3, (262144, S_T2))
        e.i(f's_lshl_b32 s{S_T3}, s{S_W}, 16')
        e.i(f's_add_u32 s{S_T3}, s{S_T3}, s{S_T1}')
        mk(R_K, S_K, S_T3, 65536)
        for _ in range(8): self.dma()
        e.i(f's_mul_i32 s{S_T1}, s{S_HQ}, {256*896}')
        e.i(f's_add_u32 s{S_T1}, s{S_T1}, s{S_T2}')
        mk(R_WO0, S_WO, S_T1, (256*896, S_T2))
        e.i(f's_add_u32 s{S_T1}, s{S_T1}, 512')
        e.i(f's_add_u32 s{S_T3}, s{S_T2}, 512')
        mk(R_WO1, S_WO, S_T1, (256*896, S_T3))
        e.i(f's_cmp_lt_u32 s{S_W}, 3')
        e.i(f's_cselect_b32 s{R_WO1+2}, s{R_WO1+2}, 0')
        e.i(f's_mul_i32 s{S_T1}, s{S_T0}, {56*16}')
        e.i(f's_add_u32 s{S_T1}, s{S_T1}, s{S_HQ}')
        e.i(f's_lshl_b32 s{S_T1}, s{S_T1}, 10')
        e.i(f's_lshl_b32 s{S_T3}, s{S_W}, 17')
        e.i(f's_add_u32 s{S_T1}, s{S_T1}, s{S_T3}')
        mk(R_P0, S_WS, S_T1, 8*16384)
        e.i(f's_add_u32 s{S_T1}, s{S_T1}, {4*8*16384}')
        mk(R_P1, S_WS, S_T1, 8*16384)
        e.i(f's_cmp_lt_u32 s{S_W}, 3')
        e.i(f's_cselect_b32 s{R_P1+2}, s{R_P1+2}, 0')
        for _ in range(8): self.dma()
        e.i(f'v_lshlrev_b32 v{t0}, 9, v{rowp}')
        e.i(f'v_add_u32 v{V_DK}, v{t0}, v{cb0}')
        e.i(f'v_add_u32 v{V_DK+1}, v{t0}, v{cb1}')
        e.i(f'v_add_u32 v{V_DK+2}, {2*3072}, v{V_DK}')
        e.i(f'v_add_u32 v{V_DK+3}, {3*3072}, v{V_DK+1}')
        e.i(f'v_add_u32 v{V_DK+1}, 3072, v{V_DK+1}')
        e.i(f'v_add_u32 v{V_DV}, v{t0}, v{ctr}')
        for j in range(1, 4):
            e.i(f'v_add_u32 v{V_DV+j}, {3072*j}, v{V_DV}')
        e.i(f'v_mul_u32_u24 v{t0}, 896, v{rowp}')
        e.i(f'v_add_u32 v{V_DWO}, v{t0}, v{ctr}')
        for j in range(1, 4):
            e.i(f'v_add_u32 v{V_DWO+j}, {6144*j}, v{V_DWO}')
        lo, hi = V_T+9, V_T+10
        e.i(f'v_and_b32 v{lo}, 31, v{L}')
        e.i(f'v_lshrrev_b32 v{hi}, 5, v{L}')
        e.i(f'v_bfe_u32 v{t0}, v{lo}, 1, 3')
        e.i(f'v_xor_b32 v{t0}, v{t0}, v{hi}')
        e.i(f'v_lshlrev_b32 v{t0}, 4, v{t0}')
        e.i(f'v_lshl_add_u32 v{V_AB}, v{lo}, 7, v{t0}')
        for s in range(1, 4):
            e.i(f'v_xor_b32 v{V_AB+s}, {32*s}, v{V_AB}')
        g1, r_, c4 = V_T+11, V_T+12, V_T+13
        e.i(f'v_bfe_u32 v{g1}, v{L}, 4, 1')
        e.i(f'v_bfe_u32 v{r_}, v{L}, 2, 2')
        e.i(f'v_and_b32 v{c4}, 3, v{L}')
        e.i(f'v_lshrrev_b32 v{t0}, 1, v{r_}')
        e.i(f'v_lshlrev_b32 v{t0}, 6, v{t0}')
        e.i(f'v_lshl_add_u32 v{t0}, v{g1}, 5, v{t0}')
        e.i(f'v_lshl_add_u32 v{t0}, v{r_}, 7, v{t0}')
        e.i(f'v_add_u32 v{t0}, s{S_RING}, v{t0}')
        e.i(f'v_and_b32 v{t1}, 1, v{c4}')
        e.i(f'v_lshlrev_b32 v{t1}, 4, v{t1}')
        e.i(f'v_lshrrev_b32 v{t2}, 1, v{c4}')
        e.i(f'v_lshl_add_u32 v{t1}, v{t2}, 3, v{t1}')
        e.i(f'v_add_u32 v{t1}, v{t1}, v{t0}')
        e.i(f'v_lshl_add_u32 v{t2}, v{c4}, 3, v{t0}')
        e.i(f'v_lshl_add_u32 v{V_TRQ}, v{hi}, 10, v{t1}')
        e.i(f'v_lshl_add_u32 v{V_TRV}, v{hi}, 9, v{t2}')
        e.i(f'v_lshl_add_u32 v{V_TRO}, v{hi}, 9, v{t1}')
        for r in (V_TRQ, V_TRV, V_TRO):
            e.i(f'v_xor_b32 v{r+1}, 64, v{r}')
        e.i(f'v_lshlrev_b32 v{V_LIN}, 4, v{L}')
        e.i(f'v_lshl_add_u32 v{V_LINW}, v{V_X}, 14, v{V_LIN}')
        e.i(f'v_lshlrev_b32 v{t0}, 2, v{L}')
        e.i(f'v_lshl_add_u32 v{V_STW}, v{V_X}, 8, v{t0}')
        e.i(f'v_lshlrev_b32 v{t0}, 2, v{lo}')
        e.i(f'v_lshl_add_u32 v{V_STR}, v{V_X}, 14, v{t0}')
        e.i(f'v_add_u32 v{V_SUMR}, {15*1024+384}, v{t0}')
        e.i(f'v_lshl_add_u32 v{V_SUMW}, v{hi}, 9, v{V_SUMR}')
        e.i(f'v_lshl_add_u32 v{V_SUMW}, v{V_X}, 14, v{V_SUMW}')
        e.i(f'v_mov_b32 v{V_SO0}, v{V_LIN}')
        e.i(f'v_cmp_gt_u32 vcc, 24, v{lo}')
        e.i(f'v_mov_b32 v{t0}, 0x40000000')
        e.i('s_nop 1')
        e.i(f'v_cndmask_b32 v{V_SO1}, v{t0}, v{V_LIN}, vcc')
        self.ts0()
        e.wait(vm=self.xtok[-1])
        self.ts0()
        e.i('s_barrier')

    def write_frags(self, acc, scale=None):
        e = self.e
        k = 0
        for t in range(2):
            for mt in range(2):
                base = acc + (t*2+mt)*16
                for s in range(2):
                    tmp = V_T + (k % 4) * 4; k += 1
                    for d in range(4):
                        a = base + 8*s + 2*d
                        if scale is not None:
                            e.i(f'v_mul_f32 v{a}, v{a}, v{scale+mt}')
                            e.i(f'v_mul_f32 v{a+1}, v{a+1}, v{scale+mt}')
                        e.i(f'v_cvt_pk_bf16_f32 v{tmp+d}, v{a}, v{a+1}')
                    e.lds(f'ds_write_b128 v{V_LINW}, {vr(tmp,4)} offset:{8192 + ((2*t+s)*2+mt)*1024}')
                    if self.can_dma(): self.dma()

    def read_bfrags(self):
        e = self.e
        toks = {}
        for kk in range(16):
            for mt in range(2):
                off = (kk >> 2) * 16384 + 8192 + ((kk & 3) * 2 + mt) * 1024
                toks[(kk, mt)] = e.lds(f'ds_read_b128 {ar(A_B + (kk*2+mt)*4, 4)}, v{V_LIN} offset:{off}')
        return toks

    def dump_act(self):
        e = self.e
        e.wait_vm_all(); e.wait_lg_all()
        e.i('s_barrier')
        e.i(f's_lshl_b32 s{S_T0}, s2, 16')
        e.i(f's_add_u32 s{S_T0}, s{S_T0}, {64<<20}')
        e.i(f's_add_u32 s{R_DBG}, s{S_WS}, s{S_T0}')
        e.i(f's_addc_u32 s{R_DBG+1}, s{S_WS+1}, 0')
        e.i(f's_mov_b32 s{R_DBG+2}, 65536')
        e.i(f's_mov_b32 s{R_DBG+3}, 0x20000')
        for k in range(16):
            e.i(f'ds_read_b128 {vr(V_T,4)}, v{V_LINW} offset:{k*1024}')
            e.i('s_waitcnt lgkmcnt(0)')
            e.i(f's_mov_b32 s{S_T0}, {k*1024}')
            e.i(f'buffer_store_dwordx4 {vr(V_T,4)}, v{V_LINW}, {srd(R_DBG)}, s{S_T0} offen')
            e.i('s_waitcnt vmcnt(0)')
        e.i('s_endpgm')

    def tr_steps(self, G0, nsteps, vtr, ustride, acc, bsrc, j0=0):
        steps = []
        for kk in range(nsteps):
            G = G0 + kk // 2
            base = self.slot_off(G) + (kk & 1) * 2048
            j = j0 + kk
            reads = []; idx = {}
            def addA(t):
                for u in range(2):
                    idx[('A', t, u)] = len(reads)
                    reads.append(f'ds_read_b64_tr_b16 {ar(self.fbuf(j, t) + 2*u, 2)}, v{vtr+t} offset:{base + u*ustride}')
            breg = {}
            def addB(mt):
                b = bsrc(kk, mt)
                if b[0] == 'reg':
                    breg[mt] = b[1]
                else:
                    idx[('B', mt)] = len(reads)
                    breg[mt] = ar(self.fbuf(j, 2 + mt), 4)
                    reads.append(f'ds_read_b128 {breg[mt]}, v{b[1]} offset:{b[2]}')
            addA(0); addB(0); addB(1); addA(1)
            mf = []
            for (t, mt) in ((0, 0), (0, 1), (1, 0), (1, 1)):
                d = vr(acc + (t*2+mt)*16, 16)
                c = '0' if kk == 0 else d
                deps = [idx[('A', t, 0)], idx[('A', t, 1)]]
                if ('B', mt) in idx: deps.append(idx[('B', mt)])
                mf.append((f'v_mfma_f32_32x32x16_bf16 {d}, {ar(self.fbuf(j, t), 4)}, {breg[mt]}, {c}', deps))
            p = 4*G + (kk & 1)*2
            steps.append(dict(reads=reads, need=p+1, free=p+2, mfmas=mf))
        return steps

    def main(self):
        e = self.e; a = self.a
        self.prologue()
        self.ts()
        e.c('phase 1')
        steps = self.tr_steps(0, 28, V_TRQ, 512, V_O,
                              lambda kk, mt: ('lds', V_AB + (kk & 3), ACT + (kk >> 2)*8192 + mt*4096))
        self.gemm(steps)
        self.ts()
        e.i('s_barrier')
        e.i('s_nop 7'); e.i('s_nop 3')
        for s in range(4):
            e.i(f'v_add_u32 v{V_AB+s}, s{S_RING}, v{V_AB+s}')
        self.write_frags(V_O)
        e.wait_lg_all()
        e.i('s_barrier')
        if a.stop == 1: return self.dump_act()
        self.read_bfrags()
        e.wait_lg_all()
        self.ts()
        e.c('phase 2')
        steps = []
        j = 0
        for tt in range(4):
            for cb in range(4):
                G = 14 + tt*4 + cb
                for half in range(2):
                    reads = []; mf = []
                    for ss in range(2):
                        s = half*2 + ss
                        KK = cb*4 + s
                        fb = ar(self.fbuf(j, ss), 4)
                        reads.append(f'ds_read_b128 {fb}, v{V_AB+s} offset:{self.slot_off(G)}')
                        for mt in range(2):
                            d = vr(V_S + (tt*2+mt)*16, 16)
                            c = '0' if KK == 0 else d
                            mf.append((f'v_mfma_f32_32x32x16_bf16 {d}, {fb}, {ar(A_B + (KK*2+mt)*4, 4)}, {c}', [ss]))
                    steps.append(dict(reads=reads, need=4*G+3, free=(4*G+4 if half == 1 else 4*G), mfmas=mf))
                    j += 1
        self.gemm(steps)
        self.ts()
        e.c('softmax')
        e.i('s_nop 7'); e.i('s_nop 3')
        for mt in range(2):
            regs = [V_S + (tt*2+mt)*16 + r for tt in range(4) for r in range(16)]
            e.i(f'v_max3_f32 v{V_MX+mt}, v{regs[0]}, v{regs[1]}, v{regs[2]}')
            e.i(f'v_max3_f32 v{V_T+mt}, v{regs[3]}, v{regs[4]}, v{regs[5]}')
            k = 6; flip = 0
            while k < 64:
                tgt = V_MX+mt if flip == 0 else V_T+mt
                e.i(f'v_max3_f32 v{tgt}, v{regs[k]}, v{regs[k+1]}, v{tgt}')
                k += 2; flip ^= 1
            e.i(f'v_max_f32 v{V_MX+mt}, v{V_MX+mt}, v{V_T+mt}')
        e.i('s_nop 1')
        e.i(f'v_permlane32_swap_b32 v{V_MX}, v{V_MX+1}')
        e.i('s_nop 1')
        e.i(f'v_max_f32 v{V_MX}, v{V_MX}, v{V_MX+1}')
        for y in range(4):
            e.lds(f'ds_write_b32 v{V_STW}, v{V_MX} offset:{y*16384}')
        e.wait_lg_all()
        e.i('s_barrier')
        for x in range(4):
            e.lds(f'ds_read2_b32 {vr(V_T+2*x,2)}, v{V_STR} offset0:{x*64} offset1:{x*64+32}')
        e.wait_lg_all()
        for mt in range(2):
            e.i(f'v_max3_f32 v{V_MX+mt}, v{V_T+mt}, v{V_T+2+mt}, v{V_T+4+mt}')
            e.i(f'v_max_f32 v{V_MX+mt}, v{V_MX+mt}, v{V_T+6+mt}')
            e.i(f'v_mul_f32 v{V_NM+mt}, s{S_C}, v{V_MX+mt}')
            e.i(f'v_mov_b32 v{V_SUM+mt}, 0')
        k = 0
        for tt in range(4):
            for s in range(2):
                for mt in range(2):
                    base = V_S + (tt*2+mt)*16 + 8*s
                    tmp = V_T + (k % 4)*4; k += 1
                    for r in range(8):
                        e.i(f'v_fma_f32 v{base+r}, v{base+r}, s{S_C}, -v{V_NM+mt}')
                    for r in range(8):
                        e.i(f'v_exp_f32 v{base+r}, v{base+r}')
                    for d in range(4):
                        e.i(f'v_cvt_pk_bf16_f32 v{tmp+d}, v{base+2*d}, v{base+2*d+1}')
                    e.lds(f'ds_write_b128 v{V_LINW}, {vr(tmp,4)} offset:{((tt*2+s)*2+mt)*1024}')
                    for d in range(4):
                        e.i(f'v_add_f32 v{base+2*d}, v{base+2*d}, v{base+2*d+1}')
                    e.i(f'v_add_f32 v{base}, v{base}, v{base+2}')
                    e.i(f'v_add_f32 v{base+4}, v{base+4}, v{base+6}')
                    e.i(f'v_add_f32 v{base}, v{base}, v{base+4}')
                    e.i(f'v_add_f32 v{V_SUM+mt}, v{V_SUM+mt}, v{base}')
                    if self.can_dma(): self.dma()
        e.i('s_nop 1')
        e.i(f'v_permlane32_swap_b32 v{V_SUM}, v{V_SUM+1}')
        e.i('s_nop 1')
        e.i(f'v_add_f32 v{V_SUM}, v{V_SUM}, v{V_SUM+1}')
        e.lds(f'ds_write_b32 v{V_SUMW}, v{V_SUM}')
        e.wait_lg_all()
        e.i('s_barrier')
        if a.stop == 2: return self.dump_act()
        for x in range(4):
            e.lds(f'ds_read_b32 v{V_X+x if x<3 else V_T}, v{V_SUMR} offset:{x*16384}')
            e.lds(f'ds_read_b32 v{V_X+3+x if x<3 else V_T+1}, v{V_SUMR} offset:{x*16384+512}')
        e.wait_lg_all()
        for mt in range(2):
            b = V_X + 3*mt
            e.i(f'v_add_f32 v{b}, v{b}, v{b+1}')
            e.i(f'v_add_f32 v{b+2}, v{b+2}, v{V_T+mt}')
            e.i(f'v_add_f32 v{b}, v{b}, v{b+2}')
            e.i(f'v_rcp_f32 v{V_SUM+mt}, v{b}')
        self.ts()
        e.c('phase 3')
        def psrc(kk, mt):
            tt, wp, s = kk >> 3, (kk >> 1) & 3, kk & 1
            return ('lds', V_LIN, wp*16384 + ((tt*2+s)*2+mt)*1024)
        steps = self.tr_steps(30, 32, V_TRV, 1024, V_O, psrc)
        self.gemm(steps)
        self.ts()
        e.i('s_barrier')
        e.i('s_nop 7'); e.i('s_nop 3')
        self.write_frags(V_O, scale=V_SUM)
        e.wait_lg_all()
        e.i('s_barrier')
        if a.stop == 3: return self.dump_act()
        self.read_bfrags()
        e.wait_lg_all()
        self.ts()
        e.c('phase 4')
        osrc = lambda kk, mt: ('reg', ar(A_B + (kk*2+mt)*4, 4))
        def store_ops(ps):
            ops = []
            acc = V_S + ps*64
            R = R_P0 if ps == 0 else R_P1
            k = 0
            for t in range(2):
                for mt in range(2):
                    for s in range(2):
                        tmp = V_T + (k % 4)*4; k += 1
                        b = acc + (t*2+mt)*16 + 8*s
                        for d in range(4):
                            ops.append(lambda tmp=tmp, d=d, b=b: e.i(f'v_cvt_pk_bf16_f32 v{tmp+d}, v{b+2*d}, v{b+2*d+1}'))
                        f = (t*2+mt)*2 + s
                        def st(tmp=tmp, f=f, mt=mt, R=R):
                            e.i(f's_mov_b32 s{S_ST}, {f*16384}')
                            e.vmem(f'buffer_store_dwordx4 {vr(tmp,4)}, v{V_SO0+mt}, {srd(R)}, s{S_ST} offen{a.stflags}')
                        ops.append(st)
            return ops
        s0 = self.tr_steps(46, 16, V_TRO, 1024, V_S, osrc)
        s1 = self.tr_steps(54, 16, V_TRO, 1024, V_S + 64, osrc, j0=16)
        nop = lambda: None
        extra = [nop]*(16*4 + 8) + store_ops(0)
        self.gemm(s0 + s1, extra=extra, per_gap_extra=1)
        self.ts()
        e.i('s_nop 7'); e.i('s_nop 3')
        for op in store_ops(1): op()
        if a.ts:
            e.wait_vm_all()
            self.ts()
            e.i(f's_lshl_b32 s{S_T0}, s2, 2')
            e.i(f's_add_u32 s{S_T0}, s{S_T0}, s{S_W}')
            e.i(f's_lshl_b32 s{S_T0}, s{S_T0}, 7')
            e.i(f's_add_u32 s{S_T0}, s{S_T0}, {128<<20}')
            e.i(f's_add_u32 s{R_DBG}, s{S_WS}, s{S_T0}')
            e.i(f's_addc_u32 s{R_DBG+1}, s{S_WS+1}, 0')
            e.i(f's_mov_b32 s{R_DBG+2}, 128')
            e.i(f's_mov_b32 s{R_DBG+3}, 0x20000')
            e.i(f'v_mov_b32 v{V_T+1}, 0')
            for k in range(self.nts):
                e.i(f'v_mov_b32 v{V_T}, s{S_TS+2*k}')
                e.i(f'buffer_store_dword v{V_T}, v{V_T+1}, {srd(R_DBG)}, 0 offen offset:{4*k}')
                e.i('s_nop 1')
            e.i(f's_memrealtime s[{S_TS}:{S_TS+1}]')
            e.i('s_waitcnt lgkmcnt(0)')
            e.i(f'v_mov_b32 v{V_T}, s{S_TS}')
            e.i(f'buffer_store_dword v{V_T}, v{V_T+1}, {srd(R_DBG)}, 0 offen offset:{4*15}')

def reduce_kernel(a):
    o = []
    i = lambda s: o.append('    ' + s)
    i('s_cmp_ge_u32 s2, 224')
    i('s_cbranch_scc1 L_rend')
    i('s_load_dwordx2 s[4:5], s[0:1], 40')
    i('s_load_dwordx2 s[6:7], s[0:1], 56')
    i('s_mul_i32 s8, s2, 4682')
    i('s_lshr_b32 s8, s8, 16')
    i('s_mul_i32 s9, s8, 14')
    i('s_sub_u32 s9, s2, s9')
    i('v_lshrrev_b32 v1, 6, v0')
    i('v_and_b32 v2, 63, v0')
    i('v_lshlrev_b32 v3, 14, v1')
    i('v_lshl_add_u32 v3, v2, 4, v3')
    i('v_and_b32 v4, 31, v0')
    i('v_bfe_u32 v5, v0, 5, 1')
    i('v_bfe_u32 v6, v0, 6, 1')
    i('v_lshrrev_b32 v7, 7, v0')
    i('v_lshl_add_u32 v8, v7, 5, v4')
    i('v_cmp_gt_u32 vcc, 56, v8')
    i('v_mov_b32 v9, 0x40000000')
    i('v_mul_u32_u24 v10, 896, v8')
    i('v_lshl_add_u32 v10, v6, 5, v10')
    i('v_lshl_add_u32 v10, v5, 4, v10')
    i('v_cndmask_b32 v3, v9, v3, vcc')
    i('v_cndmask_b32 v10, v9, v10, vcc')
    i('v_add_u32 v11, 4096, v3')
    i('v_add_u32 v12, 8192, v3')
    i('v_add_u32 v13, 12288, v3')
    i('s_waitcnt lgkmcnt(0)')
    i('s_lshl_b32 s10, s2, 16')
    i('s_add_u32 s12, s6, s10')
    i('s_addc_u32 s13, s7, 0')
    i('s_mov_b32 s14, 65536')
    i('s_mov_b32 s15, 0x20000')
    av = [3, 11, 12, 13]
    for h in range(16):
        off = f' offset:{(h&3)*1024}' if h & 3 else ''
        i(f'buffer_load_dwordx4 v[{16+4*h}:{19+4*h}], v{av[h>>2]}, s[12:15], 0 offen{off}{a.rdflags}')
    i(f's_mul_i32 s10, s8, {56*896}')
    i('s_lshl_b32 s11, s9, 6')
    i('s_add_u32 s10, s10, s11')
    i('s_add_u32 s16, s4, s10')
    i('s_addc_u32 s17, s5, 0')
    i(f's_sub_u32 s18, {896*896}, s10')
    i('s_mov_b32 s19, 0x20000')
    i('s_mov_b32 s20, 0xffff0000')
    for h in range(16):
        i(f's_waitcnt vmcnt({15-h})')
        for d in range(4):
            src = 16 + 4*h + d
            if h == 0:
                i(f'v_lshlrev_b32 v{80+2*d}, 16, v{src}')
                i(f'v_and_b32 v{81+2*d}, s20, v{src}')
            else:
                i(f'v_lshlrev_b32 v{88+2*d}, 16, v{src}')
                i(f'v_and_b32 v{89+2*d}, s20, v{src}')
                i(f'v_add_f32 v{80+2*d}, v{80+2*d}, v{88+2*d}')
                i(f'v_add_f32 v{81+2*d}, v{81+2*d}, v{89+2*d}')
    for d in range(4):
        i(f'v_cvt_pk_bf16_f32 v{88+d}, v{80+2*d}, v{81+2*d}')
    i('buffer_store_dwordx4 v[88:91], v10, s[16:19], 0 offen')
    o.append('L_rend:')
    i('s_endpgm')
    return o

HEADER = """; GQA block (Q-proj + attention + O-proj partials) followed by a head reduction.
; @launch kernel=gqa_main_kernel grid=(256,1,1) block=(256,1,1) lds=163840
; @launch kernel=gqa_reduce_kernel grid=(224,1,1) block=(256,1,1) lds=0
.amdgcn_target "amdgcn-amd-amdhsa--gfx950"
.text
"""

def kd(name, vgpr, sgpr, accum):
    return f""".p2align 6
.amdhsa_kernel {name}
  .amdhsa_next_free_vgpr {vgpr}
  .amdhsa_next_free_sgpr {sgpr}
  .amdhsa_accum_offset {accum}
  .amdhsa_group_segment_fixed_size 0
  .amdhsa_kernarg_size 64
  .amdhsa_user_sgpr_count 2
  .amdhsa_user_sgpr_kernarg_segment_ptr 1
  .amdhsa_system_sgpr_workgroup_id_x 1
.end_amdhsa_kernel
"""

def fn(name):
    return f".globl {name}\n.p2align 8\n.type {name},@function\n{name}:\n"

def build(args):
    g = Gen(args)
    g.main()
    s = HEADER
    s += fn('gqa_main_kernel') + '\n'.join(g.e.out) + '\nL_end:\n    s_endpgm\n'
    s += fn('gqa_reduce_kernel') + '\n'.join(reduce_kernel(args)) + '\n'
    s += '.section .rodata,"a"\n'
    s += kd('gqa_main_kernel', 512, 102, 256)
    s += kd('gqa_reduce_kernel', 96, 32, 96)
    return s

if __name__ == '__main__':
    p = argparse.ArgumentParser()
    p.add_argument('-o', default=f'cdna_kernels/{NAME}.s')
    p.add_argument('--pd', type=int, default=2)
    p.add_argument('--ts', action='store_true')
    p.add_argument('--tsp', action='store_true')
    p.add_argument('--stop', type=int, default=0)
    p.add_argument('--nomfma', action='store_true')
    p.add_argument('--xfirst', type=int, default=7)
    p.add_argument('--stflags', default='')
    p.add_argument('--ldflags', default='nt')
    p.add_argument('--xflags', default='nt')
    p.add_argument('--kvflags', default='nt')
    p.add_argument('--rdflags', default='')
    args = p.parse_args()
    for k in ('stflags', 'ldflags', 'xflags', 'rdflags', 'kvflags'):
        v = getattr(args, k).replace('+', ' ').replace('none', '')
        setattr(args, k, (' ' + v) if v else '')
    open(args.o, 'w').write(build(args))
```

```python
import sys, struct, argparse

NAME = "standalone__gqa_block_cached__near_ridge"

def f32bits(x):
    return struct.unpack('<I', struct.pack('<f', x))[0]

class E:
    def __init__(self):
        self.out = []
        self.vm = 0; self.vmd = 0
        self.lg = 0; self.lgd = 0
    def raw(self, s): self.out.append(s)
    def i(self, s): self.out.append('    ' + s)
    def c(self, s): self.out.append('    ; ' + s)
    def vmem(self, s):
        self.i(s); self.vm += 1; return self.vm - 1
    def lds(self, s):
        self.i(s); self.lg += 1; return self.lg - 1
    def wait(self, vm=None, lg=None):
        parts = []
        if vm is not None and vm >= self.vmd:
            n = min(self.vm - (vm + 1), 63)
            parts.append(f'vmcnt({n})'); self.vmd = self.vm - n
        if lg is not None and lg >= self.lgd:
            n = min(self.lg - (lg + 1), 15)
            parts.append(f'lgkmcnt({n})'); self.lgd = self.lg - n
        if parts:
            self.i('s_waitcnt ' + ' '.join(parts))
    def wait_lg_all(self):
        self.i('s_waitcnt lgkmcnt(0)'); self.lgd = self.lg
    def wait_vm_all(self):
        self.i('s_waitcnt vmcnt(0)'); self.vmd = self.vm

S_X, S_K, S_V, S_WQ, S_WO, S_OUT, S_DBG, S_WS = 4, 6, 8, 10, 12, 14, 16, 18
R_X, R_K, R_V, R_WQ, R_WO0, R_WO1, R_P0, R_P1 = 20, 24, 28, 32, 36, 40, 44, 48
S_W = 52
S_RING = 53
S_TILE = 54
S_SOFF = 58
S_T0, S_T1, S_T2, S_T3 = 59, 60, 61, 62
S_C = 63
S_B, S_HKV, S_I, S_HQ, S_HALF = 64, 65, 66, 67, 68
S_ST = 69
R_DBG = 72
S_TS = 76
V_S = 0
V_O = 128
V_T = 192
V_DWQ, V_DK, V_DV, V_DWO = 208, 212, 216, 220
V_AB = 224
V_TRQ, V_TRV, V_TRO = 228, 230, 232
V_LIN = 234
V_LINW = 235
V_STW = 236
V_STR = 237
V_MX = 238
V_SUM = 240
V_NM = 242
V_SO0, V_SO1 = 244, 245
V_SUMW = 246
V_SUMR = 247
V_L = 248
V_X = 249
A_B = 0
A_F = 128

ACT = 0
RING0 = 65536
RINGSZ = 24576
NSLOT = 24

def srd(r): return f's[{r}:{r+3}]'
def vr(a, n): return f'v[{a}:{a+n-1}]'
def ar(a, n): return f'a[{a}:{a+n-1}]'

class Gen:
    def __init__(self, args):
        self.a = args
        self.e = E()
        self.nts = 0
        self.groups = []
        for g in range(14):
            self.groups.append((R_WQ, V_DWQ, ('imm', g * 262144)))
        for tt in range(4):
            for cb in range(4):
                self.groups.append((R_K, V_DK, ('add', S_TILE + tt, cb * 128)))
        for tt in range(4):
            for wp in range(4):
                self.groups.append((R_V, V_DV, ('add', S_TILE + tt, wp * 65536)))
        for ps in range(2):
            for g in range(8):
                self.groups.append((R_WO0 if ps == 0 else R_WO1, V_DWO, ('imm', g * 28672)))
        self.npieces = 4 * len(self.groups)
        self.nxt = 0
        self.freed = 0
        self.ptok = {}

    def ts(self):
        if not self.a.ts: return
        if self.nts >= 12: return
        e = self.e
        e.wait_lg_all()
        e.i(f's_memtime s[{S_TS+2*self.nts}:{S_TS+2*self.nts+1}]')
        e.i(f's_memrealtime s[70:71]')
        e.i('s_waitcnt lgkmcnt(0)')
        e.i(f's_mov_b32 s{S_TS+2*self.nts+1}, s70')
        self.nts += 1

    def ts0(self):
        if not self.a.ts or not self.a.tsp: return
        self.e.i(f's_memtime s[{S_TS+2*self.nts}:{S_TS+2*self.nts+1}]')
        self.nts += 1

    def can_dma(self):
        return self.nxt < self.npieces and self.nxt < self.freed + NSLOT

    def dma(self):
        e = self.e
        p = self.nxt
        G, j = divmod(p, 4)
        r, vb, so = self.groups[G]
        if j == 0:
            slot = G % (NSLOT // 4)
            e.i(f's_add_u32 m0, s{S_RING}, {slot*4096}')
            if so[0] == 'imm':
                e.i(f's_mov_b32 s{S_SOFF}, {so[1]}')
            else:
                e.i(f's_add_u32 s{S_SOFF}, s{so[1]}, {so[2]}')
        off = f' offset:{1024*j}' if j else ''
        self.ptok[p] = e.vmem(f'buffer_load_dwordx4 v{vb+j}, {srd(r)}, s{S_SOFF} offen{off}{self.a.kvflags if r in (R_K, R_V) else self.a.ldflags} lds')
        self.nxt += 1

    def slot_off(self, G):
        return (G % (NSLOT // 4)) * 4096

    def gemm(self, steps, extra=None, per_gap_extra=0):
        e = self.e
        PD = self.a.pd
        n = len(steps)
        extra = list(extra or [])
        def issue_reads_list(st):
            l = []
            if st['need'] is not None:
                l.append(('vm', st['need']))
            for k, t in enumerate(st['reads']):
                l.append(('rd', st, k, t))
            return l
        def do(item):
            if item[0] == 'vm':
                assert item[1] in self.ptok, (item, self.nxt, self.freed)
                e.wait(vm=self.ptok[item[1]])
            else:
                _, st, k, t = item
                st.setdefault('tok', {})[k] = e.lds(t)
        for j in range(min(PD, n)):
            for it in issue_reads_list(steps[j]): do(it)
        for j in range(n):
            st = steps[j]
            q = issue_reads_list(steps[j + PD]) if j + PD < n else []
            nm = len(st['mfmas'])
            nrd = sum(1 for x in q if x[0] == 'rd')
            per = -(-nrd // nm) if nm else nrd
            for mi, (t, deps) in enumerate(st['mfmas']):
                if deps:
                    e.wait(lg=max(st['tok'][d] for d in deps))
                if not self.a.nomfma:
                    e.i(t)
                if st['reads'] and e.lgd > max(st['tok'].values()):
                    self.freed = max(self.freed, st['free'])
                cnt = 0
                while q and cnt < per:
                    it = q.pop(0)
                    do(it)
                    if it[0] == 'rd': cnt += 1
                if mi % 2 == 1 or not q:
                    if self.can_dma(): self.dma()
                for _ in range(per_gap_extra):
                    if extra: extra.pop(0)()
            assert not q
        for x in extra: x()

    def fbuf(self, j, which):
        nb = self.a.pd + 1
        return A_F + (j % nb) * 16 + which * 4

    def prologue(self):
        e = self.e
        e.i('s_cmp_ge_u32 s2, 256')
        e.i('s_cbranch_scc1 L_end')
        e.i('s_load_dwordx16 s[4:19], s[0:1], 0')
        if self.a.ts:
            e.i(f's_memtime s[{S_TS}:{S_TS+1}]'); self.nts = 1
            e.i(f's_memrealtime s[100:101]')
        e.i(f'v_and_b32 v{V_L}, 63, v0')
        e.i(f'v_lshrrev_b32 v{V_X}, 6, v0')
        if self.a.badmap:
            e.i('s_lshr_b32 s3, s2, 5')
            e.i('s_and_b32 s2, s2, 31')
            e.i('s_lshl_b32 s2, s2, 3')
            e.i('s_or_b32 s2, s2, s3')
        e.i(f's_and_b32 s{S_HKV}, s2, 7')
        e.i(f'v_readfirstlane_b32 s{S_W}, v{V_X}')
        e.i(f's_lshr_b32 s{S_T0}, s2, 3')
        e.i(f's_lshr_b32 s{S_B}, s{S_T0}, 2')
        e.i(f's_and_b32 s{S_I}, s{S_T0}, 3')
        e.i(f's_lshr_b32 s{S_T1}, s{S_I}, 1')
        e.i(f's_and_b32 s{S_HALF}, s{S_I}, 1')
        e.i(f's_lshl_b32 s{S_HQ}, s{S_HKV}, 1')
        e.i(f's_add_u32 s{S_HQ}, s{S_HQ}, s{S_T1}')
        e.i(f's_mul_i32 s{S_RING}, s{S_W}, {RINGSZ}')
        e.i(f's_add_u32 s{S_RING}, s{S_RING}, {RING0}')
        for tt in range(4):
            e.i(f's_add_u32 s{S_T0}, s{S_I}, {tt}')
            e.i(f's_and_b32 s{S_T0}, s{S_T0}, 3')
            e.i(f's_lshl_b32 s{S_TILE+tt}, s{S_T0}, 14')
        e.i(f's_mov_b32 s{S_C}, {f32bits(1.4426950408889634/16.0):#x}')
        L = V_L
        rowp, cp, l4, ctr, t0, t1, t2 = V_T, V_T+1, V_T+2, V_T+3, V_T+4, V_T+5, V_T+6
        e.i(f'v_lshrrev_b32 v{rowp}, 3, v{L}')
        e.i(f'v_and_b32 v{cp}, 7, v{L}')
        e.i(f'v_lshrrev_b32 v{l4}, 4, v{L}')
        e.i(f'v_and_b32 v{t0}, 1, v{l4}')
        e.i(f'v_lshlrev_b32 v{t0}, 2, v{t0}')
        e.i(f'v_xor_b32 v{ctr}, v{cp}, v{t0}')
        e.i(f'v_lshlrev_b32 v{ctr}, 4, v{ctr}')
        e.i(f'v_lshl_add_u32 v{V_DWQ}, v{rowp}, 13, v{ctr}')
        for j in range(1, 4):
            e.i(f'v_add_u32 v{V_DWQ+j}, {j*(8*8192-1024)}, v{V_DWQ}')
        cb0, cb1 = V_T+7, V_T+8
        e.i(f'v_xor_b32 v{cb0}, v{cp}, v{l4}')
        e.i(f'v_lshlrev_b32 v{cb0}, 4, v{cb0}')
        e.i(f'v_xor_b32 v{cb1}, 64, v{cb0}')
        e.i(f'v_lshl_add_u32 v{t0}, v{V_X}, 4, v{rowp}')
        e.i(f'v_mul_u32_u24 v{t0}, 896, v{t0}')
        e.i(f'v_add_u32 v{V_X+1}, v{t0}, v{cb0}')
        e.i(f'v_add_u32 v{V_X+2}, v{t0}, v{cb1}')
        e.i(f'v_add_u32 v{V_X+2}, {8*896-1024}, v{V_X+2}')
        e.i('s_waitcnt lgkmcnt(0)')
        self.ts0()
        def mk(r, base, off_sgpr, nrec):
            e.i(f's_add_u32 s{r}, s{base}, s{off_sgpr}')
            e.i(f's_addc_u32 s{r+1}, s{base+1}, 0')
            if isinstance(nrec, int):
                e.i(f's_mov_b32 s{r+2}, {nrec}')
            else:
                e.i(f's_sub_u32 s{r+2}, {nrec[0]}, s{nrec[1]}')
            e.i(f's_mov_b32 s{r+3}, 0x20000')
        e.i(f's_lshl_b32 s{S_T0}, s{S_B}, 1')
        e.i(f's_add_u32 s{S_T0}, s{S_T0}, s{S_HALF}')
        e.i(f's_mul_i32 s{S_T1}, s{S_T0}, {56*896}')
        mk(R_X, S_X, S_T1, 56*896)
        e.i(f's_lshl_b32 s{S_T1}, s{S_HQ}, 9')
        e.i(f's_lshl_b32 s{S_T2}, s{S_W}, 7')
        e.i(f's_add_u32 s{S_T1}, s{S_T1}, s{S_T2}')
        mk(R_WQ, S_WQ, S_T1, (448*8192, S_T1))
        e.i(f's_lshl_b32 s{S_T3}, s{S_W}, 11')
        self.xtok = []
        nx_first = self.a.xfirst
        def xdma(cb):
            e.i(f's_add_u32 m0, s{S_T3}, {ACT + cb*8192}')
            e.i(f's_mov_b32 s{S_SOFF}, {cb*128}')
            e.vmem(f'buffer_load_dwordx4 v{V_X+1}, {srd(R_X)}, s{S_SOFF} offen{self.a.xflags} lds')
            self.xtok.append(e.vmem(f'buffer_load_dwordx4 v{V_X+2}, {srd(R_X)}, s{S_SOFF} offen offset:1024{self.a.xflags} lds'))
        for cb in range(7): xdma(cb)
        self.ts0()
        for _ in range(8): self.dma()
        e.i(f's_lshl_b32 s{S_T1}, s{S_B}, 3')
        e.i(f's_add_u32 s{S_T1}, s{S_T1}, s{S_HKV}')
        e.i(f's_lshl_b32 s{S_T1}, s{S_T1}, 18')
        e.i(f's_add_u32 s{S_T3}, s{S_T1}, s{S_T2}')
        mk(R_V, S_V, S_T3, (262144, S_T2))
        e.i(f's_lshl_b32 s{S_T3}, s{S_W}, 16')
        e.i(f's_add_u32 s{S_T3}, s{S_T3}, s{S_T1}')
        mk(R_K, S_K, S_T3, 65536)
        for _ in range(8): self.dma()
        e.i(f's_mul_i32 s{S_T1}, s{S_HQ}, {256*896}')
        e.i(f's_add_u32 s{S_T1}, s{S_T1}, s{S_T2}')
        mk(R_WO0, S_WO, S_T1, (256*896, S_T2))
        e.i(f's_add_u32 s{S_T1}, s{S_T1}, 512')
        e.i(f's_add_u32 s{S_T3}, s{S_T2}, 512')
        mk(R_WO1, S_WO, S_T1, (256*896, S_T3))
        e.i(f's_cmp_lt_u32 s{S_W}, 3')
        e.i(f's_cselect_b32 s{R_WO1+2}, s{R_WO1+2}, 0')
        e.i(f's_mul_i32 s{S_T1}, s{S_T0}, {56*16}')
        e.i(f's_add_u32 s{S_T1}, s{S_T1}, s{S_HQ}')
        e.i(f's_lshl_b32 s{S_T1}, s{S_T1}, 10')
        e.i(f's_lshl_b32 s{S_T3}, s{S_W}, 17')
        e.i(f's_add_u32 s{S_T1}, s{S_T1}, s{S_T3}')
        mk(R_P0, S_WS, S_T1, 8*16384)
        e.i(f's_add_u32 s{S_T1}, s{S_T1}, {4*8*16384}')
        mk(R_P1, S_WS, S_T1, 8*16384)
        e.i(f's_cmp_lt_u32 s{S_W}, 3')
        e.i(f's_cselect_b32 s{R_P1+2}, s{R_P1+2}, 0')
        for _ in range(8): self.dma()
        e.i(f'v_lshlrev_b32 v{t0}, 9, v{rowp}')
        e.i(f'v_add_u32 v{V_DK}, v{t0}, v{cb0}')
        e.i(f'v_add_u32 v{V_DK+1}, v{t0}, v{cb1}')
        e.i(f'v_add_u32 v{V_DK+2}, {2*3072}, v{V_DK}')
        e.i(f'v_add_u32 v{V_DK+3}, {3*3072}, v{V_DK+1}')
        e.i(f'v_add_u32 v{V_DK+1}, 3072, v{V_DK+1}')
        e.i(f'v_add_u32 v{V_DV}, v{t0}, v{ctr}')
        for j in range(1, 4):
            e.i(f'v_add_u32 v{V_DV+j}, {3072*j}, v{V_DV}')
        e.i(f'v_mul_u32_u24 v{t0}, 896, v{rowp}')
        e.i(f'v_add_u32 v{V_DWO}, v{t0}, v{ctr}')
        for j in range(1, 4):
            e.i(f'v_add_u32 v{V_DWO+j}, {6144*j}, v{V_DWO}')
        lo, hi = V_T+9, V_T+10
        e.i(f'v_and_b32 v{lo}, 31, v{L}')
        e.i(f'v_lshrrev_b32 v{hi}, 5, v{L}')
        e.i(f'v_bfe_u32 v{t0}, v{lo}, 1, 3')
        e.i(f'v_xor_b32 v{t0}, v{t0}, v{hi}')
        e.i(f'v_lshlrev_b32 v{t0}, 4, v{t0}')
        e.i(f'v_lshl_add_u32 v{V_AB}, v{lo}, 7, v{t0}')
        for s in range(1, 4):
            e.i(f'v_xor_b32 v{V_AB+s}, {32*s}, v{V_AB}')
        g1, r_, c4 = V_T+11, V_T+12, V_T+13
        e.i(f'v_bfe_u32 v{g1}, v{L}, 4, 1')
        e.i(f'v_bfe_u32 v{r_}, v{L}, 2, 2')
        e.i(f'v_and_b32 v{c4}, 3, v{L}')
        e.i(f'v_lshrrev_b32 v{t0}, 1, v{r_}')
        e.i(f'v_lshlrev_b32 v{t0}, 6, v{t0}')
        e.i(f'v_lshl_add_u32 v{t0}, v{g1}, 5, v{t0}')
        e.i(f'v_lshl_add_u32 v{t0}, v{r_}, 7, v{t0}')
        e.i(f'v_add_u32 v{t0}, s{S_RING}, v{t0}')
        e.i(f'v_and_b32 v{t1}, 1, v{c4}')
        e.i(f'v_lshlrev_b32 v{t1}, 4, v{t1}')
        e.i(f'v_lshrrev_b32 v{t2}, 1, v{c4}')
        e.i(f'v_lshl_add_u32 v{t1}, v{t2}, 3, v{t1}')
        e.i(f'v_add_u32 v{t1}, v{t1}, v{t0}')
        e.i(f'v_lshl_add_u32 v{t2}, v{c4}, 3, v{t0}')
        e.i(f'v_lshl_add_u32 v{V_TRQ}, v{hi}, 10, v{t1}')
        e.i(f'v_lshl_add_u32 v{V_TRV}, v{hi}, 9, v{t2}')
        e.i(f'v_lshl_add_u32 v{V_TRO}, v{hi}, 9, v{t1}')
        for r in (V_TRQ, V_TRV, V_TRO):
            e.i(f'v_xor_b32 v{r+1}, 64, v{r}')
        e.i(f'v_lshlrev_b32 v{V_LIN}, 4, v{L}')
        e.i(f'v_lshl_add_u32 v{V_LINW}, v{V_X}, 14, v{V_LIN}')
        e.i(f'v_lshlrev_b32 v{t0}, 2, v{L}')
        e.i(f'v_lshl_add_u32 v{V_STW}, v{V_X}, 8, v{t0}')
        e.i(f'v_lshlrev_b32 v{t0}, 2, v{lo}')
        e.i(f'v_lshl_add_u32 v{V_STR}, v{V_X}, 14, v{t0}')
        e.i(f'v_add_u32 v{V_SUMR}, {15*1024+384}, v{t0}')
        e.i(f'v_lshl_add_u32 v{V_SUMW}, v{hi}, 9, v{V_SUMR}')
        e.i(f'v_lshl_add_u32 v{V_SUMW}, v{V_X}, 14, v{V_SUMW}')
        e.i(f'v_mov_b32 v{V_SO0}, v{V_LIN}')
        e.i(f'v_cmp_gt_u32 vcc, 24, v{lo}')
        e.i(f'v_mov_b32 v{t0}, 0x40000000')
        e.i('s_nop 1')
        e.i(f'v_cndmask_b32 v{V_SO1}, v{t0}, v{V_LIN}, vcc')
        self.ts0()
        e.wait(vm=self.xtok[-1])
        self.ts0()
        e.i('s_barrier')

    def write_frags(self, acc, scale=None):
        e = self.e
        k = 0
        for t in range(2):
            for mt in range(2):
                base = acc + (t*2+mt)*16
                for s in range(2):
                    tmp = V_T + (k % 4) * 4; k += 1
                    for d in range(4):
                        a = base + 8*s + 2*d
                        if scale is not None:
                            e.i(f'v_mul_f32 v{a}, v{a}, v{scale+mt}')
                            e.i(f'v_mul_f32 v{a+1}, v{a+1}, v{scale+mt}')
                        e.i(f'v_cvt_pk_bf16_f32 v{tmp+d}, v{a}, v{a+1}')
                    e.lds(f'ds_write_b128 v{V_LINW}, {vr(tmp,4)} offset:{8192 + ((2*t+s)*2+mt)*1024}')
                    if self.can_dma(): self.dma()

    def read_bfrags(self):
        e = self.e
        toks = {}
        for kk in range(16):
            for mt in range(2):
                off = (kk >> 2) * 16384 + 8192 + ((kk & 3) * 2 + mt) * 1024
                toks[(kk, mt)] = e.lds(f'ds_read_b128 {ar(A_B + (kk*2+mt)*4, 4)}, v{V_LIN} offset:{off}')
        return toks

    def dump_act(self):
        e = self.e
        e.wait_vm_all(); e.wait_lg_all()
        e.i('s_barrier')
        e.i(f's_lshl_b32 s{S_T0}, s2, 16')
        e.i(f's_add_u32 s{S_T0}, s{S_T0}, {64<<20}')
        e.i(f's_add_u32 s{R_DBG}, s{S_WS}, s{S_T0}')
        e.i(f's_addc_u32 s{R_DBG+1}, s{S_WS+1}, 0')
        e.i(f's_mov_b32 s{R_DBG+2}, 65536')
        e.i(f's_mov_b32 s{R_DBG+3}, 0x20000')
        for k in range(16):
            e.i(f'ds_read_b128 {vr(V_T,4)}, v{V_LINW} offset:{k*1024}')
            e.i('s_waitcnt lgkmcnt(0)')
            e.i(f's_mov_b32 s{S_T0}, {k*1024}')
            e.i(f'buffer_store_dwordx4 {vr(V_T,4)}, v{V_LINW}, {srd(R_DBG)}, s{S_T0} offen')
            e.i('s_waitcnt vmcnt(0)')
        e.i('s_endpgm')

    def tr_steps(self, G0, nsteps, vtr, ustride, acc, bsrc, j0=0):
        steps = []
        for kk in range(nsteps):
            G = G0 + kk // 2
            base = self.slot_off(G) + (kk & 1) * 2048
            j = j0 + kk
            reads = []; idx = {}
            def addA(t):
                for u in range(2):
                    idx[('A', t, u)] = len(reads)
                    reads.append(f'ds_read_b64_tr_b16 {ar(self.fbuf(j, t) + 2*u, 2)}, v{vtr+t} offset:{base + u*ustride}')
            breg = {}
            def addB(mt):
                b = bsrc(kk, mt)
                if b[0] == 'reg':
                    breg[mt] = b[1]
                else:
                    idx[('B', mt)] = len(reads)
                    breg[mt] = ar(self.fbuf(j, 2 + mt), 4)
                    reads.append(f'ds_read_b128 {breg[mt]}, v{b[1]} offset:{b[2]}')
            addA(0); addB(0); addB(1); addA(1)
            mf = []
            for (t, mt) in ((0, 0), (0, 1), (1, 0), (1, 1)):
                d = vr(acc + (t*2+mt)*16, 16)
                c = '0' if kk == 0 else d
                deps = [idx[('A', t, 0)], idx[('A', t, 1)]]
                if ('B', mt) in idx: deps.append(idx[('B', mt)])
                mf.append((f'v_mfma_f32_32x32x16_bf16 {d}, {ar(self.fbuf(j, t), 4)}, {breg[mt]}, {c}', deps))
            p = 4*G + (kk & 1)*2
            steps.append(dict(reads=reads, need=p+1, free=p+2, mfmas=mf))
        return steps

    def main(self):
        e = self.e; a = self.a
        self.prologue()
        self.ts()
        e.c('phase 1')
        steps = self.tr_steps(0, 28, V_TRQ, 512, V_O,
                              lambda kk, mt: ('lds', V_AB + (kk & 3), ACT + (kk >> 2)*8192 + mt*4096))
        self.gemm(steps)
        self.ts()
        e.i('s_barrier')
        e.i('s_nop 7'); e.i('s_nop 3')
        for s in range(4):
            e.i(f'v_add_u32 v{V_AB+s}, s{S_RING}, v{V_AB+s}')
        self.write_frags(V_O)
        e.wait_lg_all()
        e.i('s_barrier')
        if a.stop == 1: return self.dump_act()
        self.read_bfrags()
        e.wait_lg_all()
        self.ts()
        e.c('phase 2')
        steps = []
        j = 0
        for tt in range(4):
            for cb in range(4):
                G = 14 + tt*4 + cb
                for half in range(2):
                    reads = []; mf = []
                    for ss in range(2):
                        s = half*2 + ss
                        KK = cb*4 + s
                        fb = ar(self.fbuf(j, ss), 4)
                        reads.append(f'ds_read_b128 {fb}, v{V_AB+s} offset:{self.slot_off(G)}')
                        for mt in range(2):
                            d = vr(V_S + (tt*2+mt)*16, 16)
                            c = '0' if KK == 0 else d
                            mf.append((f'v_mfma_f32_32x32x16_bf16 {d}, {fb}, {ar(A_B + (KK*2+mt)*4, 4)}, {c}', [ss]))
                    steps.append(dict(reads=reads, need=4*G+3, free=(4*G+4 if half == 1 else 4*G), mfmas=mf))
                    j += 1
        self.gemm(steps)
        self.ts()
        e.c('softmax')
        e.i('s_nop 7'); e.i('s_nop 3')
        for mt in range(2):
            regs = [V_S + (tt*2+mt)*16 + r for tt in range(4) for r in range(16)]
            e.i(f'v_max3_f32 v{V_MX+mt}, v{regs[0]}, v{regs[1]}, v{regs[2]}')
            e.i(f'v_max3_f32 v{V_T+mt}, v{regs[3]}, v{regs[4]}, v{regs[5]}')
            k = 6; flip = 0
            while k < 64:
                tgt = V_MX+mt if flip == 0 else V_T+mt
                e.i(f'v_max3_f32 v{tgt}, v{regs[k]}, v{regs[k+1]}, v{tgt}')
                k += 2; flip ^= 1
            e.i(f'v_max_f32 v{V_MX+mt}, v{V_MX+mt}, v{V_T+mt}')
        e.i('s_nop 1')
        e.i(f'v_permlane32_swap_b32 v{V_MX}, v{V_MX+1}')
        e.i('s_nop 1')
        e.i(f'v_max_f32 v{V_MX}, v{V_MX}, v{V_MX+1}')
        for y in range(4):
            e.lds(f'ds_write_b32 v{V_STW}, v{V_MX} offset:{y*16384}')
        e.wait_lg_all()
        e.i('s_barrier')
        for x in range(4):
            e.lds(f'ds_read2_b32 {vr(V_T+2*x,2)}, v{V_STR} offset0:{x*64} offset1:{x*64+32}')
        e.wait_lg_all()
        for mt in range(2):
            e.i(f'v_max3_f32 v{V_MX+mt}, v{V_T+mt}, v{V_T+2+mt}, v{V_T+4+mt}')
            e.i(f'v_max_f32 v{V_MX+mt}, v{V_MX+mt}, v{V_T+6+mt}')
            e.i(f'v_mul_f32 v{V_NM+mt}, s{S_C}, v{V_MX+mt}')
            e.i(f'v_mov_b32 v{V_SUM+mt}, 0')
        k = 0
        for tt in range(4):
            for s in range(2):
                for mt in range(2):
                    base = V_S + (tt*2+mt)*16 + 8*s
                    tmp = V_T + (k % 4)*4; k += 1
                    for r in range(8):
                        e.i(f'v_fma_f32 v{base+r}, v{base+r}, s{S_C}, -v{V_NM+mt}')
                    for r in range(8):
                        e.i(f'v_exp_f32 v{base+r}, v{base+r}')
                    for d in range(4):
                        e.i(f'v_cvt_pk_bf16_f32 v{tmp+d}, v{base+2*d}, v{base+2*d+1}')
                    e.lds(f'ds_write_b128 v{V_LINW}, {vr(tmp,4)} offset:{((tt*2+s)*2+mt)*1024}')
                    for d in range(4):
                        e.i(f'v_add_f32 v{base+2*d}, v{base+2*d}, v{base+2*d+1}')
                    e.i(f'v_add_f32 v{base}, v{base}, v{base+2}')
                    e.i(f'v_add_f32 v{base+4}, v{base+4}, v{base+6}')
                    e.i(f'v_add_f32 v{base}, v{base}, v{base+4}')
                    e.i(f'v_add_f32 v{V_SUM+mt}, v{V_SUM+mt}, v{base}')
                    if self.can_dma(): self.dma()
        e.i('s_nop 1')
        e.i(f'v_permlane32_swap_b32 v{V_SUM}, v{V_SUM+1}')
        e.i('s_nop 1')
        e.i(f'v_add_f32 v{V_SUM}, v{V_SUM}, v{V_SUM+1}')
        e.lds(f'ds_write_b32 v{V_SUMW}, v{V_SUM}')
        e.wait_lg_all()
        e.i('s_barrier')
        if a.stop == 2: return self.dump_act()
        for x in range(4):
            e.lds(f'ds_read_b32 v{V_X+x if x<3 else V_T}, v{V_SUMR} offset:{x*16384}')
            e.lds(f'ds_read_b32 v{V_X+3+x if x<3 else V_T+1}, v{V_SUMR} offset:{x*16384+512}')
        e.wait_lg_all()
        for mt in range(2):
            b = V_X + 3*mt
            e.i(f'v_add_f32 v{b}, v{b}, v{b+1}')
            e.i(f'v_add_f32 v{b+2}, v{b+2}, v{V_T+mt}')
            e.i(f'v_add_f32 v{b}, v{b}, v{b+2}')
            e.i(f'v_rcp_f32 v{V_SUM+mt}, v{b}')
        self.ts()
        e.c('phase 3')
        def psrc(kk, mt):
            tt, wp, s = kk >> 3, (kk >> 1) & 3, kk & 1
            return ('lds', V_LIN, wp*16384 + ((tt*2+s)*2+mt)*1024)
        steps = self.tr_steps(30, 32, V_TRV, 1024, V_O, psrc)
        self.gemm(steps)
        self.ts()
        e.i('s_barrier')
        e.i('s_nop 7'); e.i('s_nop 3')
        self.write_frags(V_O, scale=V_SUM)
        e.wait_lg_all()
        e.i('s_barrier')
        if a.stop == 3: return self.dump_act()
        self.read_bfrags()
        e.wait_lg_all()
        self.ts()
        e.c('phase 4')
        osrc = lambda kk, mt: ('reg', ar(A_B + (kk*2+mt)*4, 4))
        def store_ops(ps):
            ops = []
            acc = V_S + ps*64
            R = R_P0 if ps == 0 else R_P1
            k = 0
            for t in range(2):
                for mt in range(2):
                    for s in range(2):
                        tmp = V_T + (k % 4)*4; k += 1
                        b = acc + (t*2+mt)*16 + 8*s
                        for d in range(4):
                            ops.append(lambda tmp=tmp, d=d, b=b: e.i(f'v_cvt_pk_bf16_f32 v{tmp+d}, v{b+2*d}, v{b+2*d+1}'))
                        f = (t*2+mt)*2 + s
                        def st(tmp=tmp, f=f, mt=mt, R=R):
                            e.i(f's_mov_b32 s{S_ST}, {f*16384}')
                            e.vmem(f'buffer_store_dwordx4 {vr(tmp,4)}, v{V_SO0+mt}, {srd(R)}, s{S_ST} offen{a.stflags}')
                        ops.append(st)
            return ops
        s0 = self.tr_steps(46, 16, V_TRO, 1024, V_S, osrc)
        s1 = self.tr_steps(54, 16, V_TRO, 1024, V_S + 64, osrc, j0=16)
        nop = lambda: None
        extra = [nop]*(16*4 + 8) + store_ops(0)
        self.gemm(s0 + s1, extra=extra, per_gap_extra=1)
        self.ts()
        e.i('s_nop 7'); e.i('s_nop 3')
        for op in store_ops(1): op()
        if a.ts:
            e.wait_vm_all()
            self.ts()
            if a.dbgwg >= 0:
                e.i(f's_mov_b32 s{R_DBG}, s{S_DBG}')
                e.i(f's_mov_b32 s{R_DBG+1}, s{S_DBG+1}')
                e.i(f's_lshl_b32 s{S_T0}, s2, 2')
                e.i(f's_add_u32 s{S_T0}, s{S_T0}, s{S_W}')
                e.i(f's_cmp_eq_u32 s{S_T0}, {a.dbgwg*4}')
                e.i(f's_cselect_b32 s{R_DBG+2}, 64, 0')
                e.i(f's_mov_b32 s{R_DBG+3}, 0x20000')
                e.i(f'v_mov_b32 v{V_T+1}, 0')
                for k in range(1, self.nts):
                    e.i(f's_sub_u32 s{S_T0}, s{S_TS+2*k}, s{S_TS+2*k-2}')
                    e.i(f'v_mov_b32 v{V_T}, s{S_T0}')
                    e.i(f'buffer_store_dword v{V_T}, v{V_T+1}, {srd(R_DBG)}, 0 offen offset:{4*(k-1)}')
                    e.i('s_nop 1')
                e.i(f's_sub_u32 s{S_T0}, s{S_TS+2*self.nts-1}, s100')
                e.i(f'v_mov_b32 v{V_T}, s{S_T0}')
                e.i(f'buffer_store_dword v{V_T}, v{V_T+1}, {srd(R_DBG)}, 0 offen offset:60')
                e.i('s_nop 1')
            e.i(f's_lshl_b32 s{S_T0}, s2, 2')
            e.i(f's_add_u32 s{S_T0}, s{S_T0}, s{S_W}')
            e.i(f's_lshl_b32 s{S_T0}, s{S_T0}, 7')
            e.i(f's_add_u32 s{S_T0}, s{S_T0}, {128<<20}')
            e.i(f's_add_u32 s{R_DBG}, s{S_WS}, s{S_T0}')
            e.i(f's_addc_u32 s{R_DBG+1}, s{S_WS+1}, 0')
            e.i(f's_mov_b32 s{R_DBG+2}, 128')
            e.i(f's_mov_b32 s{R_DBG+3}, 0x20000')
            e.i(f'v_mov_b32 v{V_T+1}, 0')
            for k in range(self.nts):
                e.i(f'v_mov_b32 v{V_T}, s{S_TS+2*k}')
                e.i(f'buffer_store_dword v{V_T}, v{V_T+1}, {srd(R_DBG)}, 0 offen offset:{4*k}')
                e.i('s_nop 1')
                if k:
                    e.i(f'v_mov_b32 v{V_T}, s{S_TS+2*k+1}')
                    e.i(f'buffer_store_dword v{V_T}, v{V_T+1}, {srd(R_DBG)}, 0 offen offset:{4*(16+k)}')
                    e.i('s_nop 1')
            e.i(f's_memrealtime s[{S_TS}:{S_TS+1}]')
            e.i('s_waitcnt lgkmcnt(0)')
            e.i(f'v_mov_b32 v{V_T}, s{S_TS}')
            e.i(f'buffer_store_dword v{V_T}, v{V_T+1}, {srd(R_DBG)}, 0 offen offset:{4*15}')
            e.i('s_nop 1')
            e.i(f'v_mov_b32 v{V_T}, s100')
            e.i(f'buffer_store_dword v{V_T}, v{V_T+1}, {srd(R_DBG)}, 0 offen offset:{4*16}')

def reduce_kernel(a):
    o = []
    i = lambda s: o.append('    ' + s)
    i('s_cmp_ge_u32 s2, 224')
    i('s_cbranch_scc1 L_rend')
    i('s_load_dwordx2 s[4:5], s[0:1], 40')
    i('s_load_dwordx2 s[6:7], s[0:1], 56')
    i('s_mul_i32 s8, s2, 4682')
    i('s_lshr_b32 s8, s8, 16')
    i('s_mul_i32 s9, s8, 14')
    i('s_sub_u32 s9, s2, s9')
    i('v_lshrrev_b32 v1, 6, v0')
    i('v_and_b32 v2, 63, v0')
    i('v_lshlrev_b32 v3, 14, v1')
    i('v_lshl_add_u32 v3, v2, 4, v3')
    i('v_and_b32 v4, 31, v0')
    i('v_bfe_u32 v5, v0, 5, 1')
    i('v_bfe_u32 v6, v0, 6, 1')
    i('v_lshrrev_b32 v7, 7, v0')
    i('v_lshl_add_u32 v8, v7, 5, v4')
    i('v_cmp_gt_u32 vcc, 56, v8')
    i('v_mov_b32 v9, 0x40000000')
    i('v_mul_u32_u24 v10, 896, v8')
    i('v_lshl_add_u32 v10, v6, 5, v10')
    i('v_lshl_add_u32 v10, v5, 4, v10')
    i('v_cndmask_b32 v3, v9, v3, vcc')
    i('v_cndmask_b32 v10, v9, v10, vcc')
    i('v_add_u32 v11, 4096, v3')
    i('v_add_u32 v12, 8192, v3')
    i('v_add_u32 v13, 12288, v3')
    i('s_waitcnt lgkmcnt(0)')
    i('s_lshl_b32 s10, s2, 16')
    i('s_add_u32 s12, s6, s10')
    i('s_addc_u32 s13, s7, 0')
    i('s_mov_b32 s14, 65536')
    i('s_mov_b32 s15, 0x20000')
    av = [3, 11, 12, 13]
    for h in range(16):
        off = f' offset:{(h&3)*1024}' if h & 3 else ''
        i(f'buffer_load_dwordx4 v[{16+4*h}:{19+4*h}], v{av[h>>2]}, s[12:15], 0 offen{off}{a.rdflags}')
    i(f's_mul_i32 s10, s8, {56*896}')
    i('s_lshl_b32 s11, s9, 6')
    i('s_add_u32 s10, s10, s11')
    i('s_add_u32 s16, s4, s10')
    i('s_addc_u32 s17, s5, 0')
    i(f's_sub_u32 s18, {896*896}, s10')
    i('s_mov_b32 s19, 0x20000')
    i('s_mov_b32 s20, 0xffff0000')
    for h in range(16):
        i(f's_waitcnt vmcnt({15-h})')
        for d in range(4):
            src = 16 + 4*h + d
            if h == 0:
                i(f'v_lshlrev_b32 v{80+2*d}, 16, v{src}')
                i(f'v_and_b32 v{81+2*d}, s20, v{src}')
            else:
                i(f'v_lshlrev_b32 v{88+2*d}, 16, v{src}')
                i(f'v_and_b32 v{89+2*d}, s20, v{src}')
                i(f'v_add_f32 v{80+2*d}, v{80+2*d}, v{88+2*d}')
                i(f'v_add_f32 v{81+2*d}, v{81+2*d}, v{89+2*d}')
    for d in range(4):
        i(f'v_cvt_pk_bf16_f32 v{88+d}, v{80+2*d}, v{81+2*d}')
    i('buffer_store_dwordx4 v[88:91], v10, s[16:19], 0 offen')
    o.append('L_rend:')
    i('s_endpgm')
    return o

HEADER = """; GQA block (Q-proj + attention + O-proj partials) followed by a head reduction.
; @launch kernel=gqa_main_kernel grid=(256,1,1) block=(256,1,1) lds=163840
; @launch kernel=gqa_reduce_kernel grid=(224,1,1) block=(256,1,1) lds=0
.amdgcn_target "amdgcn-amd-amdhsa--gfx950"
.text
"""

def kd(name, vgpr, sgpr, accum):
    return f""".p2align 6
.amdhsa_kernel {name}
  .amdhsa_next_free_vgpr {vgpr}
  .amdhsa_next_free_sgpr {sgpr}
  .amdhsa_accum_offset {accum}
  .amdhsa_group_segment_fixed_size 0
  .amdhsa_kernarg_size 64
  .amdhsa_user_sgpr_count 2
  .amdhsa_user_sgpr_kernarg_segment_ptr 1
  .amdhsa_system_sgpr_workgroup_id_x 1
.end_amdhsa_kernel
"""

def fn(name):
    return f".globl {name}\n.p2align 8\n.type {name},@function\n{name}:\n"

def build(args):
    g = Gen(args)
    g.main()
    s = HEADER
    s += fn('gqa_main_kernel') + '\n'.join(g.e.out) + '\nL_end:\n    s_endpgm\n'
    s += fn('gqa_reduce_kernel') + '\n'.join(reduce_kernel(args)) + '\n'
    s += '.section .rodata,"a"\n'
    s += kd('gqa_main_kernel', 512, 102, 256)
    s += kd('gqa_reduce_kernel', 96, 32, 96)
    return s

if __name__ == '__main__':
    p = argparse.ArgumentParser()
    p.add_argument('-o', default=f'cdna_kernels/{NAME}.s')
    p.add_argument('--pd', type=int, default=2)
    p.add_argument('--ts', action='store_true')
    p.add_argument('--tsp', action='store_true')
    p.add_argument('--badmap', action='store_true')
    p.add_argument('--dbgwg', type=int, default=-1)
    p.add_argument('--stop', type=int, default=0)
    p.add_argument('--nomfma', action='store_true')
    p.add_argument('--xfirst', type=int, default=7)
    p.add_argument('--stflags', default='')
    p.add_argument('--ldflags', default='')
    p.add_argument('--xflags', default='')
    p.add_argument('--kvflags', default='')
    p.add_argument('--rdflags', default='')
    args = p.parse_args()
    for k in ('stflags', 'ldflags', 'xflags', 'rdflags', 'kvflags'):
        v = getattr(args, k).replace('+', ' ').replace('none', '')
        setattr(args, k, (' ' + v) if v else '')
    open(args.o, 'w').write(build(args))
```

```python
import sys, struct, argparse

NAME = "standalone__gqa_block_cached__near_ridge"

def f32bits(x):
    return struct.unpack('<I', struct.pack('<f', x))[0]

class E:
    def __init__(self):
        self.out = []
        self.vm = 0; self.vmd = 0
        self.lg = 0; self.lgd = 0
    def raw(self, s): self.out.append(s)
    def i(self, s): self.out.append('    ' + s)
    def c(self, s): self.out.append('    ; ' + s)
    def vmem(self, s):
        self.i(s); self.vm += 1; return self.vm - 1
    def lds(self, s):
        self.i(s); self.lg += 1; return self.lg - 1
    def wait(self, vm=None, lg=None):
        parts = []
        if vm is not None and vm >= self.vmd:
            n = min(self.vm - (vm + 1), 63)
            parts.append(f'vmcnt({n})'); self.vmd = self.vm - n
        if lg is not None and lg >= self.lgd:
            n = min(self.lg - (lg + 1), 15)
            parts.append(f'lgkmcnt({n})'); self.lgd = self.lg - n
        if parts:
            self.i('s_waitcnt ' + ' '.join(parts))
    def wait_lg_all(self):
        self.i('s_waitcnt lgkmcnt(0)'); self.lgd = self.lg
    def wait_vm_all(self):
        self.i('s_waitcnt vmcnt(0)'); self.vmd = self.vm

S_X, S_K, S_V, S_WQ, S_WO, S_OUT, S_DBG, S_WS = 4, 6, 8, 10, 12, 14, 16, 18
R_X, R_K, R_V, R_WQ, R_WO0, R_WO1, R_P0, R_P1 = 20, 24, 28, 32, 36, 40, 44, 48
S_W = 52
S_RING = 53
S_TILE = 54
S_SOFF = 58
S_T0, S_T1, S_T2, S_T3 = 59, 60, 61, 62
S_C = 63
S_B, S_HKV, S_I, S_HQ, S_HALF = 64, 65, 66, 67, 68
S_ST = 69
R_DBG = 72
S_TS = 76
V_S = 0
V_O = 128
V_T = 192
V_DWQ, V_DK, V_DV, V_DWO = 208, 212, 216, 220
V_AB = 224
V_TRQ, V_TRV, V_TRO = 228, 230, 232
V_LIN = 234
V_LINW = 235
V_STW = 236
V_STR = 237
V_MX = 238
V_SUM = 240
V_NM = 242
V_SO0, V_SO1 = 244, 245
V_SUMW = 246
V_SUMR = 247
V_L = 248
V_X = 249
A_B = 0
A_F = 128

ACT = 0
RING0 = 65536
RINGSZ = 24576
NSLOT = 24

def srd(r): return f's[{r}:{r+3}]'
def vr(a, n): return f'v[{a}:{a+n-1}]'
def ar(a, n): return f'a[{a}:{a+n-1}]'

class Gen:
    def __init__(self, args):
        self.a = args
        self.e = E()
        self.nts = 0
        self.groups = []
        for g in range(14):
            self.groups.append((R_WQ, V_DWQ, ('imm', g * 262144)))
        for tt in range(4):
            for cb in range(4):
                self.groups.append((R_K, V_DK, ('add', S_TILE + tt, cb * 128)))
        for tt in range(4):
            for wp in range(4):
                self.groups.append((R_V, V_DV, ('add', S_TILE + tt, wp * 65536)))
        for ps in range(2):
            for g in range(8):
                self.groups.append((R_WO0 if ps == 0 else R_WO1, V_DWO, ('imm', g * 28672)))
        self.npieces = 4 * len(self.groups)
        self.nxt = 0
        self.freed = 0
        self.ptok = {}

    def ts(self):
        if not self.a.ts: return
        if self.nts >= 12: return
        e = self.e
        e.wait_lg_all()
        e.i(f's_memtime s[{S_TS+2*self.nts}:{S_TS+2*self.nts+1}]')
        e.i(f's_memrealtime s[70:71]')
        e.i('s_waitcnt lgkmcnt(0)')
        e.i(f's_mov_b32 s{S_TS+2*self.nts+1}, s70')
        self.nts += 1

    def ts0(self):
        if not self.a.ts or not self.a.tsp: return
        self.e.i(f's_memtime s[{S_TS+2*self.nts}:{S_TS+2*self.nts+1}]')
        self.nts += 1

    def can_dma(self):
        return self.nxt < self.npieces and self.nxt < self.freed + NSLOT

    def dma(self):
        e = self.e
        p = self.nxt
        G, j = divmod(p, 4)
        r, vb, so = self.groups[G]
        if j == 0:
            slot = G % (NSLOT // 4)
            e.i(f's_add_u32 m0, s{S_RING}, {slot*4096}')
            if so[0] == 'imm':
                e.i(f's_mov_b32 s{S_SOFF}, {so[1]}')
            else:
                e.i(f's_add_u32 s{S_SOFF}, s{so[1]}, {so[2]}')
        off = f' offset:{1024*j}' if j else ''
        self.ptok[p] = e.vmem(f'buffer_load_dwordx4 v{vb+j}, {srd(r)}, s{S_SOFF} offen{off}{self.a.kvflags if r in (R_K, R_V) else self.a.ldflags} lds')
        self.nxt += 1

    def slot_off(self, G):
        return (G % (NSLOT // 4)) * 4096

    def gemm(self, steps, extra=None, per_gap_extra=0):
        e = self.e
        PD = self.a.pd
        n = len(steps)
        extra = list(extra or [])
        def issue_reads_list(st):
            l = []
            if st['need'] is not None:
                l.append(('vm', st['need']))
            for k, t in enumerate(st['reads']):
                l.append(('rd', st, k, t))
            return l
        def do(item):
            if item[0] == 'vm':
                assert item[1] in self.ptok, (item, self.nxt, self.freed)
                e.wait(vm=self.ptok[item[1]])
            else:
                _, st, k, t = item
                st.setdefault('tok', {})[k] = e.lds(t)
        for j in range(min(PD, n)):
            for it in issue_reads_list(steps[j]): do(it)
        for j in range(n):
            st = steps[j]
            q = issue_reads_list(steps[j + PD]) if j + PD < n else []
            nm = len(st['mfmas'])
            nrd = sum(1 for x in q if x[0] == 'rd')
            per = -(-nrd // nm) if nm else nrd
            for mi, (t, deps) in enumerate(st['mfmas']):
                if deps:
                    e.wait(lg=max(st['tok'][d] for d in deps))
                if not self.a.nomfma:
                    e.i(t)
                if st['reads'] and e.lgd > max(st['tok'].values()):
                    self.freed = max(self.freed, st['free'])
                cnt = 0
                while q and cnt < per:
                    it = q.pop(0)
                    do(it)
                    if it[0] == 'rd': cnt += 1
                if mi % 2 == 1 or not q:
                    if self.can_dma(): self.dma()
                for _ in range(per_gap_extra):
                    if extra: extra.pop(0)()
            assert not q
        for x in extra: x()

    def fbuf(self, j, which):
        nb = self.a.pd + 1
        return A_F + (j % nb) * 16 + which * 4

    def prologue(self):
        e = self.e
        e.i('s_cmp_ge_u32 s2, 256')
        e.i('s_cbranch_scc1 L_end')
        e.i('s_load_dwordx16 s[4:19], s[0:1], 0')
        if self.a.ts:
            e.i(f's_memtime s[{S_TS}:{S_TS+1}]'); self.nts = 1
            e.i(f's_memrealtime s[100:101]')
        e.i(f'v_and_b32 v{V_L}, 63, v0')
        e.i(f'v_lshrrev_b32 v{V_X}, 6, v0')
        if self.a.badmap:
            e.i('s_lshr_b32 s3, s2, 5')
            e.i('s_and_b32 s2, s2, 31')
            e.i('s_lshl_b32 s2, s2, 3')
            e.i('s_or_b32 s2, s2, s3')
        e.i(f's_and_b32 s{S_HKV}, s2, 7')
        e.i(f'v_readfirstlane_b32 s{S_W}, v{V_X}')
        e.i(f's_lshr_b32 s{S_T0}, s2, 3')
        e.i(f's_lshr_b32 s{S_B}, s{S_T0}, 2')
        e.i(f's_and_b32 s{S_I}, s{S_T0}, 3')
        e.i(f's_lshr_b32 s{S_T1}, s{S_I}, 1')
        e.i(f's_and_b32 s{S_HALF}, s{S_I}, 1')
        e.i(f's_lshl_b32 s{S_HQ}, s{S_HKV}, 1')
        e.i(f's_add_u32 s{S_HQ}, s{S_HQ}, s{S_T1}')
        e.i(f's_mul_i32 s{S_RING}, s{S_W}, {RINGSZ}')
        e.i(f's_add_u32 s{S_RING}, s{S_RING}, {RING0}')
        for tt in range(4):
            e.i(f's_add_u32 s{S_T0}, s{S_I}, {tt}')
            e.i(f's_and_b32 s{S_T0}, s{S_T0}, 3')
            e.i(f's_lshl_b32 s{S_TILE+tt}, s{S_T0}, 14')
        e.i(f's_mov_b32 s{S_C}, {f32bits(1.4426950408889634/16.0):#x}')
        L = V_L
        rowp, cp, l4, ctr, t0, t1, t2 = V_T, V_T+1, V_T+2, V_T+3, V_T+4, V_T+5, V_T+6
        e.i(f'v_lshrrev_b32 v{rowp}, 3, v{L}')
        e.i(f'v_and_b32 v{cp}, 7, v{L}')
        e.i(f'v_lshrrev_b32 v{l4}, 4, v{L}')
        e.i(f'v_and_b32 v{t0}, 1, v{l4}')
        e.i(f'v_lshlrev_b32 v{t0}, 2, v{t0}')
        e.i(f'v_xor_b32 v{ctr}, v{cp}, v{t0}')
        e.i(f'v_lshlrev_b32 v{ctr}, 4, v{ctr}')
        e.i(f'v_lshl_add_u32 v{V_DWQ}, v{rowp}, 13, v{ctr}')
        for j in range(1, 4):
            e.i(f'v_add_u32 v{V_DWQ+j}, {j*(8*8192-1024)}, v{V_DWQ}')
        cb0, cb1 = V_T+7, V_T+8
        e.i(f'v_xor_b32 v{cb0}, v{cp}, v{l4}')
        e.i(f'v_lshlrev_b32 v{cb0}, 4, v{cb0}')
        e.i(f'v_xor_b32 v{cb1}, 64, v{cb0}')
        e.i(f'v_lshl_add_u32 v{t0}, v{V_X}, 4, v{rowp}')
        e.i(f'v_mul_u32_u24 v{t0}, 896, v{t0}')
        e.i(f'v_add_u32 v{V_X+1}, v{t0}, v{cb0}')
        e.i(f'v_add_u32 v{V_X+2}, v{t0}, v{cb1}')
        e.i(f'v_add_u32 v{V_X+2}, {8*896-1024}, v{V_X+2}')
        e.i('s_waitcnt lgkmcnt(0)')
        self.ts0()
        def mk(r, base, off_sgpr, nrec):
            e.i(f's_add_u32 s{r}, s{base}, s{off_sgpr}')
            e.i(f's_addc_u32 s{r+1}, s{base+1}, 0')
            if isinstance(nrec, int):
                e.i(f's_mov_b32 s{r+2}, {nrec}')
            else:
                e.i(f's_sub_u32 s{r+2}, {nrec[0]}, s{nrec[1]}')
            e.i(f's_mov_b32 s{r+3}, 0x20000')
        e.i(f's_lshl_b32 s{S_T0}, s{S_B}, 1')
        e.i(f's_add_u32 s{S_T0}, s{S_T0}, s{S_HALF}')
        e.i(f's_mul_i32 s{S_T1}, s{S_T0}, {56*896}')
        mk(R_X, S_X, S_T1, 56*896)
        e.i(f's_lshl_b32 s{S_T1}, s{S_HQ}, 9')
        e.i(f's_lshl_b32 s{S_T2}, s{S_W}, 7')
        e.i(f's_add_u32 s{S_T1}, s{S_T1}, s{S_T2}')
        mk(R_WQ, S_WQ, S_T1, (448*8192, S_T1))
        e.i(f's_lshl_b32 s{S_T3}, s{S_W}, 11')
        self.xtok = []
        nx_first = self.a.xfirst
        def xdma(cb):
            e.i(f's_add_u32 m0, s{S_T3}, {ACT + cb*8192}')
            e.i(f's_mov_b32 s{S_SOFF}, {cb*128}')
            e.vmem(f'buffer_load_dwordx4 v{V_X+1}, {srd(R_X)}, s{S_SOFF} offen{self.a.xflags} lds')
            self.xtok.append(e.vmem(f'buffer_load_dwordx4 v{V_X+2}, {srd(R_X)}, s{S_SOFF} offen offset:1024{self.a.xflags} lds'))
        for cb in range(7): xdma(cb)
        self.ts0()
        for _ in range(8): self.dma()
        e.i(f's_lshl_b32 s{S_T1}, s{S_B}, 3')
        e.i(f's_add_u32 s{S_T1}, s{S_T1}, s{S_HKV}')
        e.i(f's_lshl_b32 s{S_T1}, s{S_T1}, 18')
        e.i(f's_add_u32 s{S_T3}, s{S_T1}, s{S_T2}')
        mk(R_V, S_V, S_T3, (262144, S_T2))
        e.i(f's_lshl_b32 s{S_T3}, s{S_W}, 16')
        e.i(f's_add_u32 s{S_T3}, s{S_T3}, s{S_T1}')
        mk(R_K, S_K, S_T3, 65536)
        for _ in range(8): self.dma()
        e.i(f's_mul_i32 s{S_T1}, s{S_HQ}, {256*896}')
        e.i(f's_add_u32 s{S_T1}, s{S_T1}, s{S_T2}')
        mk(R_WO0, S_WO, S_T1, (256*896, S_T2))
        e.i(f's_add_u32 s{S_T1}, s{S_T1}, 512')
        e.i(f's_add_u32 s{S_T3}, s{S_T2}, 512')
        mk(R_WO1, S_WO, S_T1, (256*896, S_T3))
        e.i(f's_cmp_lt_u32 s{S_W}, 3')
        e.i(f's_cselect_b32 s{R_WO1+2}, s{R_WO1+2}, 0')
        e.i(f's_mul_i32 s{S_T1}, s{S_T0}, {56*16}')
        e.i(f's_add_u32 s{S_T1}, s{S_T1}, s{S_HQ}')
        e.i(f's_lshl_b32 s{S_T1}, s{S_T1}, 10')
        e.i(f's_lshl_b32 s{S_T3}, s{S_W}, 17')
        e.i(f's_add_u32 s{S_T1}, s{S_T1}, s{S_T3}')
        mk(R_P0, S_WS, S_T1, 8*16384)
        e.i(f's_add_u32 s{S_T1}, s{S_T1}, {4*8*16384}')
        mk(R_P1, S_WS, S_T1, 8*16384)
        e.i(f's_cmp_lt_u32 s{S_W}, 3')
        e.i(f's_cselect_b32 s{R_P1+2}, s{R_P1+2}, 0')
        for _ in range(8): self.dma()
        e.i(f'v_lshlrev_b32 v{t0}, 9, v{rowp}')
        e.i(f'v_add_u32 v{V_DK}, v{t0}, v{cb0}')
        e.i(f'v_add_u32 v{V_DK+1}, v{t0}, v{cb1}')
        e.i(f'v_add_u32 v{V_DK+2}, {2*3072}, v{V_DK}')
        e.i(f'v_add_u32 v{V_DK+3}, {3*3072}, v{V_DK+1}')
        e.i(f'v_add_u32 v{V_DK+1}, 3072, v{V_DK+1}')
        e.i(f'v_add_u32 v{V_DV}, v{t0}, v{ctr}')
        for j in range(1, 4):
            e.i(f'v_add_u32 v{V_DV+j}, {3072*j}, v{V_DV}')
        e.i(f'v_mul_u32_u24 v{t0}, 896, v{rowp}')
        e.i(f'v_add_u32 v{V_DWO}, v{t0}, v{ctr}')
        for j in range(1, 4):
            e.i(f'v_add_u32 v{V_DWO+j}, {6144*j}, v{V_DWO}')
        lo, hi = V_T+9, V_T+10
        e.i(f'v_and_b32 v{lo}, 31, v{L}')
        e.i(f'v_lshrrev_b32 v{hi}, 5, v{L}')
        e.i(f'v_bfe_u32 v{t0}, v{lo}, 1, 3')
        e.i(f'v_xor_b32 v{t0}, v{t0}, v{hi}')
        e.i(f'v_lshlrev_b32 v{t0}, 4, v{t0}')
        e.i(f'v_lshl_add_u32 v{V_AB}, v{lo}, 7, v{t0}')
        for s in range(1, 4):
            e.i(f'v_xor_b32 v{V_AB+s}, {32*s}, v{V_AB}')
        g1, r_, c4 = V_T+11, V_T+12, V_T+13
        e.i(f'v_bfe_u32 v{g1}, v{L}, 4, 1')
        e.i(f'v_bfe_u32 v{r_}, v{L}, 2, 2')
        e.i(f'v_and_b32 v{c4}, 3, v{L}')
        e.i(f'v_lshrrev_b32 v{t0}, 1, v{r_}')
        e.i(f'v_lshlrev_b32 v{t0}, 6, v{t0}')
        e.i(f'v_lshl_add_u32 v{t0}, v{g1}, 5, v{t0}')
        e.i(f'v_lshl_add_u32 v{t0}, v{r_}, 7, v{t0}')
        e.i(f'v_add_u32 v{t0}, s{S_RING}, v{t0}')
        e.i(f'v_and_b32 v{t1}, 1, v{c4}')
        e.i(f'v_lshlrev_b32 v{t1}, 4, v{t1}')
        e.i(f'v_lshrrev_b32 v{t2}, 1, v{c4}')
        e.i(f'v_lshl_add_u32 v{t1}, v{t2}, 3, v{t1}')
        e.i(f'v_add_u32 v{t1}, v{t1}, v{t0}')
        e.i(f'v_lshl_add_u32 v{t2}, v{c4}, 3, v{t0}')
        e.i(f'v_lshl_add_u32 v{V_TRQ}, v{hi}, 10, v{t1}')
        e.i(f'v_lshl_add_u32 v{V_TRV}, v{hi}, 9, v{t2}')
        e.i(f'v_lshl_add_u32 v{V_TRO}, v{hi}, 9, v{t1}')
        for r in (V_TRQ, V_TRV, V_TRO):
            e.i(f'v_xor_b32 v{r+1}, 64, v{r}')
        e.i(f'v_lshlrev_b32 v{V_LIN}, 4, v{L}')
        e.i(f'v_lshl_add_u32 v{V_LINW}, v{V_X}, 14, v{V_LIN}')
        e.i(f'v_lshlrev_b32 v{t0}, 2, v{L}')
        e.i(f'v_lshl_add_u32 v{V_STW}, v{V_X}, 8, v{t0}')
        e.i(f'v_lshlrev_b32 v{t0}, 2, v{lo}')
        e.i(f'v_lshl_add_u32 v{V_STR}, v{V_X}, 14, v{t0}')
        e.i(f'v_add_u32 v{V_SUMR}, {15*1024+384}, v{t0}')
        e.i(f'v_lshl_add_u32 v{V_SUMW}, v{hi}, 9, v{V_SUMR}')
        e.i(f'v_lshl_add_u32 v{V_SUMW}, v{V_X}, 14, v{V_SUMW}')
        e.i(f'v_mov_b32 v{V_SO0}, v{V_LIN}')
        e.i(f'v_cmp_gt_u32 vcc, 24, v{lo}')
        e.i(f'v_mov_b32 v{t0}, 0x40000000')
        e.i('s_nop 1')
        e.i(f'v_cndmask_b32 v{V_SO1}, v{t0}, v{V_LIN}, vcc')
        self.ts0()
        e.wait(vm=self.xtok[-1])
        self.ts0()
        e.i('s_barrier')

    def write_frags(self, acc, scale=None):
        e = self.e
        k = 0
        for t in range(2):
            for mt in range(2):
                base = acc + (t*2+mt)*16
                for s in range(2):
                    tmp = V_T + (k % 4) * 4; k += 1
                    for d in range(4):
                        a = base + 8*s + 2*d
                        if scale is not None:
                            e.i(f'v_mul_f32 v{a}, v{a}, v{scale+mt}')
                            e.i(f'v_mul_f32 v{a+1}, v{a+1}, v{scale+mt}')
                        e.i(f'v_cvt_pk_bf16_f32 v{tmp+d}, v{a}, v{a+1}')
                    e.lds(f'ds_write_b128 v{V_LINW}, {vr(tmp,4)} offset:{8192 + ((2*t+s)*2+mt)*1024}')
                    if self.can_dma(): self.dma()

    def read_bfrags(self):
        e = self.e
        toks = {}
        for kk in range(16):
            for mt in range(2):
                off = (kk >> 2) * 16384 + 8192 + ((kk & 3) * 2 + mt) * 1024
                toks[(kk, mt)] = e.lds(f'ds_read_b128 {ar(A_B + (kk*2+mt)*4, 4)}, v{V_LIN} offset:{off}')
        return toks

    def dump_act(self):
        e = self.e
        e.wait_vm_all(); e.wait_lg_all()
        e.i('s_barrier')
        e.i(f's_lshl_b32 s{S_T0}, s2, 16')
        e.i(f's_add_u32 s{S_T0}, s{S_T0}, {64<<20}')
        e.i(f's_add_u32 s{R_DBG}, s{S_WS}, s{S_T0}')
        e.i(f's_addc_u32 s{R_DBG+1}, s{S_WS+1}, 0')
        e.i(f's_mov_b32 s{R_DBG+2}, 65536')
        e.i(f's_mov_b32 s{R_DBG+3}, 0x20000')
        for k in range(16):
            e.i(f'ds_read_b128 {vr(V_T,4)}, v{V_LINW} offset:{k*1024}')
            e.i('s_waitcnt lgkmcnt(0)')
            e.i(f's_mov_b32 s{S_T0}, {k*1024}')
            e.i(f'buffer_store_dwordx4 {vr(V_T,4)}, v{V_LINW}, {srd(R_DBG)}, s{S_T0} offen')
            e.i('s_waitcnt vmcnt(0)')
        e.i('s_endpgm')

    def tr_steps(self, G0, nsteps, vtr, ustride, acc, bsrc, j0=0):
        steps = []
        for kk in range(nsteps):
            G = G0 + kk // 2
            base = self.slot_off(G) + (kk & 1) * 2048
            j = j0 + kk
            reads = []; idx = {}
            def addA(t):
                for u in range(2):
                    idx[('A', t, u)] = len(reads)
                    reads.append(f'ds_read_b64_tr_b16 {ar(self.fbuf(j, t) + 2*u, 2)}, v{vtr+t} offset:{base + u*ustride}')
            breg = {}
            def addB(mt):
                b = bsrc(kk, mt)
                if b[0] == 'reg':
                    breg[mt] = b[1]
                else:
                    idx[('B', mt)] = len(reads)
                    breg[mt] = ar(self.fbuf(j, 2 + mt), 4)
                    reads.append(f'ds_read_b128 {breg[mt]}, v{b[1]} offset:{b[2]}')
            addA(0); addB(0); addB(1); addA(1)
            mf = []
            for (t, mt) in ((0, 0), (0, 1), (1, 0), (1, 1)):
                d = vr(acc + (t*2+mt)*16, 16)
                c = '0' if kk == 0 else d
                deps = [idx[('A', t, 0)], idx[('A', t, 1)]]
                if ('B', mt) in idx: deps.append(idx[('B', mt)])
                mf.append((f'v_mfma_f32_32x32x16_bf16 {d}, {ar(self.fbuf(j, t), 4)}, {breg[mt]}, {c}', deps))
            p = 4*G + (kk & 1)*2
            steps.append(dict(reads=reads, need=p+1, free=p+2, mfmas=mf))
        return steps

    def main(self):
        e = self.e; a = self.a
        self.prologue()
        self.ts()
        e.c('phase 1')
        steps = self.tr_steps(0, 28, V_TRQ, 512, V_O,
                              lambda kk, mt: ('lds', V_AB + (kk & 3), ACT + (kk >> 2)*8192 + mt*4096))
        self.gemm(steps)
        self.ts()
        e.i('s_barrier')
        e.i('s_nop 7'); e.i('s_nop 3')
        for s in range(4):
            e.i(f'v_add_u32 v{V_AB+s}, s{S_RING}, v{V_AB+s}')
        self.write_frags(V_O)
        e.wait_lg_all()
        e.i('s_barrier')
        if a.stop == 1: return self.dump_act()
        self.read_bfrags()
        e.wait_lg_all()
        self.ts()
        e.c('phase 2')
        steps = []
        j = 0
        for tt in range(4):
            for cb in range(4):
                G = 14 + tt*4 + cb
                for half in range(2):
                    reads = []; mf = []
                    for ss in range(2):
                        s = half*2 + ss
                        KK = cb*4 + s
                        fb = ar(self.fbuf(j, ss), 4)
                        reads.append(f'ds_read_b128 {fb}, v{V_AB+s} offset:{self.slot_off(G)}')
                        for mt in range(2):
                            d = vr(V_S + (tt*2+mt)*16, 16)
                            c = '0' if KK == 0 else d
                            mf.append((f'v_mfma_f32_32x32x16_bf16 {d}, {fb}, {ar(A_B + (KK*2+mt)*4, 4)}, {c}', [ss]))
                    steps.append(dict(reads=reads, need=4*G+3, free=(4*G+4 if half == 1 else 4*G), mfmas=mf))
                    j += 1
        self.gemm(steps)
        self.ts()
        e.c('softmax')
        e.i('s_nop 7'); e.i('s_nop 3')
        for mt in range(2):
            regs = [V_S + (tt*2+mt)*16 + r for tt in range(4) for r in range(16)]
            e.i(f'v_max3_f32 v{V_MX+mt}, v{regs[0]}, v{regs[1]}, v{regs[2]}')
            e.i(f'v_max3_f32 v{V_T+mt}, v{regs[3]}, v{regs[4]}, v{regs[5]}')
            k = 6; flip = 0
            while k < 64:
                tgt = V_MX+mt if flip == 0 else V_T+mt
                e.i(f'v_max3_f32 v{tgt}, v{regs[k]}, v{regs[k+1]}, v{tgt}')
                k += 2; flip ^= 1
            e.i(f'v_max_f32 v{V_MX+mt}, v{V_MX+mt}, v{V_T+mt}')
        e.i('s_nop 1')
        e.i(f'v_permlane32_swap_b32 v{V_MX}, v{V_MX+1}')
        e.i('s_nop 1')
        e.i(f'v_max_f32 v{V_MX}, v{V_MX}, v{V_MX+1}')
        for y in range(4):
            e.lds(f'ds_write_b32 v{V_STW}, v{V_MX} offset:{y*16384}')
        e.wait_lg_all()
        e.i('s_barrier')
        for x in range(4):
            e.lds(f'ds_read2_b32 {vr(V_T+2*x,2)}, v{V_STR} offset0:{x*64} offset1:{x*64+32}')
        e.wait_lg_all()
        for mt in range(2):
            e.i(f'v_max3_f32 v{V_MX+mt}, v{V_T+mt}, v{V_T+2+mt}, v{V_T+4+mt}')
            e.i(f'v_max_f32 v{V_MX+mt}, v{V_MX+mt}, v{V_T+6+mt}')
            e.i(f'v_mul_f32 v{V_NM+mt}, s{S_C}, v{V_MX+mt}')
            e.i(f'v_mov_b32 v{V_SUM+mt}, 0')
        k = 0
        for tt in range(4):
            for s in range(2):
                for mt in range(2):
                    base = V_S + (tt*2+mt)*16 + 8*s
                    tmp = V_T + (k % 4)*4; k += 1
                    for r in range(8):
                        e.i(f'v_fma_f32 v{base+r}, v{base+r}, s{S_C}, -v{V_NM+mt}')
                    for r in range(8):
                        e.i(f'v_exp_f32 v{base+r}, v{base+r}')
                    for d in range(4):
                        e.i(f'v_cvt_pk_bf16_f32 v{tmp+d}, v{base+2*d}, v{base+2*d+1}')
                    e.lds(f'ds_write_b128 v{V_LINW}, {vr(tmp,4)} offset:{((tt*2+s)*2+mt)*1024}')
                    for d in range(4):
                        e.i(f'v_add_f32 v{base+2*d}, v{base+2*d}, v{base+2*d+1}')
                    e.i(f'v_add_f32 v{base}, v{base}, v{base+2}')
                    e.i(f'v_add_f32 v{base+4}, v{base+4}, v{base+6}')
                    e.i(f'v_add_f32 v{base}, v{base}, v{base+4}')
                    e.i(f'v_add_f32 v{V_SUM+mt}, v{V_SUM+mt}, v{base}')
                    if self.can_dma(): self.dma()
        e.i('s_nop 1')
        e.i(f'v_permlane32_swap_b32 v{V_SUM}, v{V_SUM+1}')
        e.i('s_nop 1')
        e.i(f'v_add_f32 v{V_SUM}, v{V_SUM}, v{V_SUM+1}')
        e.lds(f'ds_write_b32 v{V_SUMW}, v{V_SUM}')
        e.wait_lg_all()
        e.i('s_barrier')
        if a.stop == 2: return self.dump_act()
        for x in range(4):
            e.lds(f'ds_read_b32 v{V_X+x if x<3 else V_T}, v{V_SUMR} offset:{x*16384}')
            e.lds(f'ds_read_b32 v{V_X+3+x if x<3 else V_T+1}, v{V_SUMR} offset:{x*16384+512}')
        e.wait_lg_all()
        for mt in range(2):
            b = V_X + 3*mt
            e.i(f'v_add_f32 v{b}, v{b}, v{b+1}')
            e.i(f'v_add_f32 v{b+2}, v{b+2}, v{V_T+mt}')
            e.i(f'v_add_f32 v{b}, v{b}, v{b+2}')
            e.i(f'v_rcp_f32 v{V_SUM+mt}, v{b}')
        self.ts()
        e.c('phase 3')
        def psrc(kk, mt):
            tt, wp, s = kk >> 3, (kk >> 1) & 3, kk & 1
            return ('lds', V_LIN, wp*16384 + ((tt*2+s)*2+mt)*1024)
        steps = self.tr_steps(30, 32, V_TRV, 1024, V_O, psrc)
        self.gemm(steps)
        self.ts()
        e.i('s_barrier')
        e.i('s_nop 7'); e.i('s_nop 3')
        self.write_frags(V_O, scale=V_SUM)
        e.wait_lg_all()
        e.i('s_barrier')
        if a.stop == 3: return self.dump_act()
        self.read_bfrags()
        e.wait_lg_all()
        self.ts()
        e.c('phase 4')
        osrc = lambda kk, mt: ('reg', ar(A_B + (kk*2+mt)*4, 4))
        def store_ops(ps):
            ops = []
            acc = V_S + ps*64
            R = R_P0 if ps == 0 else R_P1
            k = 0
            for t in range(2):
                for mt in range(2):
                    for s in range(2):
                        tmp = V_T + (k % 4)*4; k += 1
                        b = acc + (t*2+mt)*16 + 8*s
                        for d in range(4):
                            ops.append(lambda tmp=tmp, d=d, b=b: e.i(f'v_cvt_pk_bf16_f32 v{tmp+d}, v{b+2*d}, v{b+2*d+1}'))
                        f = (t*2+mt)*2 + s
                        def st(tmp=tmp, f=f, mt=mt, R=R):
                            e.i(f's_mov_b32 s{S_ST}, {f*16384}')
                            e.vmem(f'buffer_store_dwordx4 {vr(tmp,4)}, v{V_SO0+mt}, {srd(R)}, s{S_ST} offen{a.stflags}')
                        ops.append(st)
            return ops
        s0 = self.tr_steps(46, 16, V_TRO, 1024, V_S, osrc)
        s1 = self.tr_steps(54, 16, V_TRO, 1024, V_S + 64, osrc, j0=16)
        nop = lambda: None
        extra = [nop]*(16*4 + 8) + store_ops(0)
        self.gemm(s0 + s1, extra=extra, per_gap_extra=1)
        self.ts()
        e.i('s_nop 7'); e.i('s_nop 3')
        for op in store_ops(1): op()
        if a.ts:
            e.wait_vm_all()
            self.ts()
            if a.dbgwg >= 0:
                e.i(f's_add_u32 s{R_DBG}, s{S_WS}, {129<<20}')
                e.i(f's_addc_u32 s{R_DBG+1}, s{S_WS+1}, 0')
                e.i(f's_lshl_b32 s{S_T0}, s2, 2')
                e.i(f's_add_u32 s{S_T0}, s{S_T0}, s{S_W}')
                e.i(f's_cmp_eq_u32 s{S_T0}, {a.dbgwg*4}')
                e.i(f's_cselect_b32 s{R_DBG+2}, 64, 0')
                e.i(f's_mov_b32 s{R_DBG+3}, 0x20000')
                e.i(f'v_mov_b32 v{V_T+1}, 0')
                for k in range(1, self.nts):
                    e.i(f's_sub_u32 s{S_T0}, s{S_TS+2*k}, s{S_TS+2*k-2}')
                    e.i(f'v_mov_b32 v{V_T}, s{S_T0}')
                    e.i(f'buffer_store_dword v{V_T}, v{V_T+1}, {srd(R_DBG)}, 0 offen offset:{4*(k-1)}')
                    e.i('s_nop 1')
                e.i(f's_sub_u32 s{S_T0}, s{S_TS+2*self.nts-1}, s100')
                e.i(f'v_mov_b32 v{V_T}, s{S_T0}')
                e.i(f'buffer_store_dword v{V_T}, v{V_T+1}, {srd(R_DBG)}, 0 offen offset:60')
                e.i('s_nop 1')
            e.i(f's_lshl_b32 s{S_T0}, s2, 2')
            e.i(f's_add_u32 s{S_T0}, s{S_T0}, s{S_W}')
            e.i(f's_lshl_b32 s{S_T0}, s{S_T0}, 7')
            e.i(f's_add_u32 s{S_T0}, s{S_T0}, {128<<20}')
            e.i(f's_add_u32 s{R_DBG}, s{S_WS}, s{S_T0}')
            e.i(f's_addc_u32 s{R_DBG+1}, s{S_WS+1}, 0')
            e.i(f's_mov_b32 s{R_DBG+2}, 128')
            e.i(f's_mov_b32 s{R_DBG+3}, 0x20000')
            e.i(f'v_mov_b32 v{V_T+1}, 0')
            for k in range(self.nts):
                e.i(f'v_mov_b32 v{V_T}, s{S_TS+2*k}')
                e.i(f'buffer_store_dword v{V_T}, v{V_T+1}, {srd(R_DBG)}, 0 offen offset:{4*k}')
                e.i('s_nop 1')
                if k:
                    e.i(f'v_mov_b32 v{V_T}, s{S_TS+2*k+1}')
                    e.i(f'buffer_store_dword v{V_T}, v{V_T+1}, {srd(R_DBG)}, 0 offen offset:{4*(16+k)}')
                    e.i('s_nop 1')
            e.i(f's_memrealtime s[{S_TS}:{S_TS+1}]')
            e.i('s_waitcnt lgkmcnt(0)')
            e.i(f'v_mov_b32 v{V_T}, s{S_TS}')
            e.i(f'buffer_store_dword v{V_T}, v{V_T+1}, {srd(R_DBG)}, 0 offen offset:{4*15}')
            e.i('s_nop 1')
            e.i(f'v_mov_b32 v{V_T}, s100')
            e.i(f'buffer_store_dword v{V_T}, v{V_T+1}, {srd(R_DBG)}, 0 offen offset:{4*16}')

def reduce_kernel(a):
    o = []
    i = lambda s: o.append('    ' + s)
    i('s_cmp_ge_u32 s2, 224')
    i('s_cbranch_scc1 L_rend')
    i('s_load_dwordx2 s[4:5], s[0:1], 40')
    i('s_load_dwordx2 s[6:7], s[0:1], 56')
    i('s_mul_i32 s8, s2, 4682')
    i('s_lshr_b32 s8, s8, 16')
    i('s_mul_i32 s9, s8, 14')
    i('s_sub_u32 s9, s2, s9')
    i('v_lshrrev_b32 v1, 6, v0')
    i('v_and_b32 v2, 63, v0')
    i('v_lshlrev_b32 v3, 14, v1')
    i('v_lshl_add_u32 v3, v2, 4, v3')
    i('v_and_b32 v4, 31, v0')
    i('v_bfe_u32 v5, v0, 5, 1')
    i('v_bfe_u32 v6, v0, 6, 1')
    i('v_lshrrev_b32 v7, 7, v0')
    i('v_lshl_add_u32 v8, v7, 5, v4')
    i('v_cmp_gt_u32 vcc, 56, v8')
    i('v_mov_b32 v9, 0x40000000')
    i('v_mul_u32_u24 v10, 896, v8')
    i('v_lshl_add_u32 v10, v6, 5, v10')
    i('v_lshl_add_u32 v10, v5, 4, v10')
    i('v_cndmask_b32 v3, v9, v3, vcc')
    i('v_cndmask_b32 v10, v9, v10, vcc')
    i('v_add_u32 v11, 4096, v3')
    i('v_add_u32 v12, 8192, v3')
    i('v_add_u32 v13, 12288, v3')
    i('s_waitcnt lgkmcnt(0)')
    i('s_lshl_b32 s10, s2, 16')
    i('s_add_u32 s12, s6, s10')
    i('s_addc_u32 s13, s7, 0')
    i('s_mov_b32 s14, 65536')
    i('s_mov_b32 s15, 0x20000')
    av = [3, 11, 12, 13]
    for h in range(16):
        off = f' offset:{(h&3)*1024}' if h & 3 else ''
        i(f'buffer_load_dwordx4 v[{16+4*h}:{19+4*h}], v{av[h>>2]}, s[12:15], 0 offen{off}{a.rdflags}')
    i(f's_mul_i32 s10, s8, {56*896}')
    i('s_lshl_b32 s11, s9, 6')
    i('s_add_u32 s10, s10, s11')
    i('s_add_u32 s16, s4, s10')
    i('s_addc_u32 s17, s5, 0')
    i(f's_sub_u32 s18, {896*896}, s10')
    i('s_mov_b32 s19, 0x20000')
    i('s_mov_b32 s20, 0xffff0000')
    for h in range(16):
        i(f's_waitcnt vmcnt({15-h})')
        for d in range(4):
            src = 16 + 4*h + d
            if h == 0:
                i(f'v_lshlrev_b32 v{80+2*d}, 16, v{src}')
                i(f'v_and_b32 v{81+2*d}, s20, v{src}')
            else:
                i(f'v_lshlrev_b32 v{88+2*d}, 16, v{src}')
                i(f'v_and_b32 v{89+2*d}, s20, v{src}')
                i(f'v_add_f32 v{80+2*d}, v{80+2*d}, v{88+2*d}')
                i(f'v_add_f32 v{81+2*d}, v{81+2*d}, v{89+2*d}')
    for d in range(4):
        i(f'v_cvt_pk_bf16_f32 v{88+d}, v{80+2*d}, v{81+2*d}')
    i('buffer_store_dwordx4 v[88:91], v10, s[16:19], 0 offen')
    if a.dbgwg >= 0:
        i('s_load_dwordx2 s[24:25], s[0:1], 48')
        i(f's_add_u32 s12, s6, {129<<20}')
        i('s_addc_u32 s13, s7, 0')
        i('s_mov_b32 s14, 64')
        i('v_lshlrev_b32 v1, 2, v0')
        i('buffer_load_dword v2, v1, s[12:15], 0 offen')
        i('s_waitcnt vmcnt(0) lgkmcnt(0)')
        i('s_mov_b32 s26, 64')
        i('s_mov_b32 s27, 0x20000')
        i('buffer_store_dword v2, v1, s[24:27], 0 offen')
    o.append('L_rend:')
    i('s_endpgm')
    return o

HEADER = """; GQA block (Q-proj + attention + O-proj partials) followed by a head reduction.
; @launch kernel=gqa_main_kernel grid=(256,1,1) block=(256,1,1) lds=163840
; @launch kernel=gqa_reduce_kernel grid=(224,1,1) block=(256,1,1) lds=0
.amdgcn_target "amdgcn-amd-amdhsa--gfx950"
.text
"""

def kd(name, vgpr, sgpr, accum):
    return f""".p2align 6
.amdhsa_kernel {name}
  .amdhsa_next_free_vgpr {vgpr}
  .amdhsa_next_free_sgpr {sgpr}
  .amdhsa_accum_offset {accum}
  .amdhsa_group_segment_fixed_size 0
  .amdhsa_kernarg_size 64
  .amdhsa_user_sgpr_count 2
  .amdhsa_user_sgpr_kernarg_segment_ptr 1
  .amdhsa_system_sgpr_workgroup_id_x 1
.end_amdhsa_kernel
"""

def fn(name):
    return f".globl {name}\n.p2align 8\n.type {name},@function\n{name}:\n"

def build(args):
    g = Gen(args)
    g.main()
    s = HEADER
    s += fn('gqa_main_kernel') + '\n'.join(g.e.out) + '\nL_end:\n    s_endpgm\n'
    s += fn('gqa_reduce_kernel') + '\n'.join(reduce_kernel(args)) + '\n'
    s += '.section .rodata,"a"\n'
    s += kd('gqa_main_kernel', 512, 102, 256)
    s += kd('gqa_reduce_kernel', 96, 32, 96)
    return s

if __name__ == '__main__':
    p = argparse.ArgumentParser()
    p.add_argument('-o', default=f'cdna_kernels/{NAME}.s')
    p.add_argument('--pd', type=int, default=2)
    p.add_argument('--ts', action='store_true')
    p.add_argument('--tsp', action='store_true')
    p.add_argument('--badmap', action='store_true')
    p.add_argument('--dbgwg', type=int, default=-1)
    p.add_argument('--stop', type=int, default=0)
    p.add_argument('--nomfma', action='store_true')
    p.add_argument('--xfirst', type=int, default=7)
    p.add_argument('--stflags', default='')
    p.add_argument('--ldflags', default='')
    p.add_argument('--xflags', default='')
    p.add_argument('--kvflags', default='')
    p.add_argument('--rdflags', default='')
    args = p.parse_args()
    for k in ('stflags', 'ldflags', 'xflags', 'rdflags', 'kvflags'):
        v = getattr(args, k).replace('+', ' ').replace('none', '')
        setattr(args, k, (' ' + v) if v else '')
    open(args.o, 'w').write(build(args))
```

```python
import sys, struct, argparse

NAME = "standalone__gqa_block_cached__near_ridge"

def f32bits(x):
    return struct.unpack('<I', struct.pack('<f', x))[0]

class E:
    def __init__(self):
        self.out = []
        self.vm = 0; self.vmd = 0
        self.lg = 0; self.lgd = 0
    def raw(self, s): self.out.append(s)
    def i(self, s): self.out.append('    ' + s)
    def c(self, s): self.out.append('    ; ' + s)
    def vmem(self, s):
        self.i(s); self.vm += 1; return self.vm - 1
    def lds(self, s):
        self.i(s); self.lg += 1; return self.lg - 1
    def wait(self, vm=None, lg=None):
        parts = []
        if vm is not None and vm >= self.vmd:
            n = min(self.vm - (vm + 1), 63)
            parts.append(f'vmcnt({n})'); self.vmd = self.vm - n
        if lg is not None and lg >= self.lgd:
            n = min(self.lg - (lg + 1), 15)
            parts.append(f'lgkmcnt({n})'); self.lgd = self.lg - n
        if parts:
            self.i('s_waitcnt ' + ' '.join(parts))
    def wait_lg_all(self):
        self.i('s_waitcnt lgkmcnt(0)'); self.lgd = self.lg
    def wait_vm_all(self):
        self.i('s_waitcnt vmcnt(0)'); self.vmd = self.vm

S_X, S_K, S_V, S_WQ, S_WO, S_OUT, S_DBG, S_WS = 4, 6, 8, 10, 12, 14, 16, 18
R_X, R_K, R_V, R_WQ, R_WO0, R_WO1, R_P0, R_P1 = 20, 24, 28, 32, 36, 40, 44, 48
S_W = 52
S_RING = 53
S_TILE = 54
S_SOFF = 58
S_T0, S_T1, S_T2, S_T3 = 59, 60, 61, 62
S_C = 63
S_B, S_HKV, S_I, S_HQ, S_HALF = 64, 65, 66, 67, 68
S_ST = 69
R_DBG = 72
S_TS = 76
V_S = 0
V_O = 128
V_T = 192
V_DWQ, V_DK, V_DV, V_DWO = 208, 212, 216, 220
V_AB = 224
V_TRQ, V_TRV, V_TRO = 228, 230, 232
V_LIN = 234
V_LINW = 235
V_STW = 236
V_STR = 237
V_MX = 238
V_SUM = 240
V_NM = 242
V_SO0, V_SO1 = 244, 245
V_SUMW = 246
V_SUMR = 247
V_L = 248
V_X = 249
A_B = 0
A_F = 128

ACT = 0
RING0 = 65536
RINGSZ = 24576
NSLOT = 24

def srd(r): return f's[{r}:{r+3}]'
def vr(a, n): return f'v[{a}:{a+n-1}]'
def ar(a, n): return f'a[{a}:{a+n-1}]'

class Gen:
    def __init__(self, args):
        self.a = args
        self.e = E()
        self.nts = 0
        self.groups = []
        for g in range(14):
            self.groups.append((R_WQ, V_DWQ, ('imm', g * 262144)))
        for tt in range(4):
            for cb in range(4):
                self.groups.append((R_K, V_DK, ('add', S_TILE + tt, cb * 128)))
        for tt in range(4):
            for wp in range(4):
                self.groups.append((R_V, V_DV, ('add', S_TILE + tt, wp * 65536)))
        for ps in range(2):
            for g in range(8):
                self.groups.append((R_WO0 if ps == 0 else R_WO1, V_DWO, ('imm', g * 28672)))
        self.npieces = 4 * len(self.groups)
        self.nxt = 0
        self.freed = 0
        self.ptok = {}

    def ts(self):
        if not self.a.ts: return
        if self.nts >= 12: return
        e = self.e
        e.wait_lg_all()
        e.i(f's_memtime s[{S_TS+2*self.nts}:{S_TS+2*self.nts+1}]')
        e.i(f's_memrealtime s[70:71]')
        e.i('s_waitcnt lgkmcnt(0)')
        e.i(f's_mov_b32 s{S_TS+2*self.nts+1}, s70')
        self.nts += 1

    def ts0(self):
        if not self.a.ts or not self.a.tsp: return
        self.e.i(f's_memtime s[{S_TS+2*self.nts}:{S_TS+2*self.nts+1}]')
        self.nts += 1

    def can_dma(self):
        return self.nxt < self.npieces and self.nxt < self.freed + NSLOT

    def dma(self):
        e = self.e
        p = self.nxt
        G, j = divmod(p, 4)
        r, vb, so = self.groups[G]
        if j == 0:
            slot = G % (NSLOT // 4)
            e.i(f's_add_u32 m0, s{S_RING}, {slot*4096}')
            if so[0] == 'imm':
                e.i(f's_mov_b32 s{S_SOFF}, {so[1]}')
            else:
                e.i(f's_add_u32 s{S_SOFF}, s{so[1]}, {so[2]}')
        off = f' offset:{1024*j}' if j else ''
        self.ptok[p] = e.vmem(f'buffer_load_dwordx4 v{vb+j}, {srd(r)}, s{S_SOFF} offen{off}{self.a.kvflags if r in (R_K, R_V) else self.a.ldflags} lds')
        self.nxt += 1

    def slot_off(self, G):
        return (G % (NSLOT // 4)) * 4096

    def gemm(self, steps, extra=None, per_gap_extra=0):
        e = self.e
        PD = self.a.pd
        n = len(steps)
        extra = list(extra or [])
        def issue_reads_list(st):
            l = []
            if st['need'] is not None:
                l.append(('vm', st['need']))
            for k, t in enumerate(st['reads']):
                l.append(('rd', st, k, t))
            return l
        def do(item):
            if item[0] == 'vm':
                assert item[1] in self.ptok, (item, self.nxt, self.freed)
                e.wait(vm=self.ptok[item[1]])
            else:
                _, st, k, t = item
                st.setdefault('tok', {})[k] = e.lds(t)
        for j in range(min(PD, n)):
            for it in issue_reads_list(steps[j]): do(it)
        for j in range(n):
            st = steps[j]
            q = issue_reads_list(steps[j + PD]) if j + PD < n else []
            nm = len(st['mfmas'])
            nrd = sum(1 for x in q if x[0] == 'rd')
            per = -(-nrd // nm) if nm else nrd
            for mi, (t, deps) in enumerate(st['mfmas']):
                if deps:
                    e.wait(lg=max(st['tok'][d] for d in deps))
                if not self.a.nomfma:
                    e.i(t)
                if st['reads'] and e.lgd > max(st['tok'].values()):
                    self.freed = max(self.freed, st['free'])
                cnt = 0
                while q and cnt < per:
                    it = q.pop(0)
                    do(it)
                    if it[0] == 'rd': cnt += 1
                if mi % 2 == 1 or not q:
                    if self.can_dma(): self.dma()
                for _ in range(per_gap_extra):
                    if extra: extra.pop(0)()
            assert not q
        for x in extra: x()

    def fbuf(self, j, which):
        nb = self.a.pd + 1
        return A_F + (j % nb) * 16 + which * 4

    def prologue(self):
        e = self.e
        e.i('s_cmp_ge_u32 s2, 256')
        e.i('s_cbranch_scc1 L_end')
        e.i('s_load_dwordx16 s[4:19], s[0:1], 0')
        if self.a.ts:
            e.i(f's_memtime s[{S_TS}:{S_TS+1}]'); self.nts = 1
            e.i(f's_memrealtime s[100:101]')
        e.i(f'v_and_b32 v{V_L}, 63, v0')
        e.i(f'v_lshrrev_b32 v{V_X}, 6, v0')
        if self.a.badmap:
            e.i('s_lshr_b32 s3, s2, 5')
            e.i('s_and_b32 s2, s2, 31')
            e.i('s_lshl_b32 s2, s2, 3')
            e.i('s_or_b32 s2, s2, s3')
        e.i(f's_and_b32 s{S_HKV}, s2, 7')
        e.i(f'v_readfirstlane_b32 s{S_W}, v{V_X}')
        e.i(f's_lshr_b32 s{S_T0}, s2, 3')
        e.i(f's_lshr_b32 s{S_B}, s{S_T0}, 2')
        e.i(f's_and_b32 s{S_I}, s{S_T0}, 3')
        e.i(f's_lshr_b32 s{S_T1}, s{S_I}, 1')
        e.i(f's_and_b32 s{S_HALF}, s{S_I}, 1')
        e.i(f's_lshl_b32 s{S_HQ}, s{S_HKV}, 1')
        e.i(f's_add_u32 s{S_HQ}, s{S_HQ}, s{S_T1}')
        e.i(f's_mul_i32 s{S_RING}, s{S_W}, {RINGSZ}')
        e.i(f's_add_u32 s{S_RING}, s{S_RING}, {RING0}')
        for tt in range(4):
            e.i(f's_add_u32 s{S_T0}, s{S_I}, {tt}')
            e.i(f's_and_b32 s{S_T0}, s{S_T0}, 3')
            e.i(f's_lshl_b32 s{S_TILE+tt}, s{S_T0}, 14')
        e.i(f's_mov_b32 s{S_C}, {f32bits(1.4426950408889634/16.0):#x}')
        L = V_L
        rowp, cp, l4, ctr, t0, t1, t2 = V_T, V_T+1, V_T+2, V_T+3, V_T+4, V_T+5, V_T+6
        e.i(f'v_lshrrev_b32 v{rowp}, 3, v{L}')
        e.i(f'v_and_b32 v{cp}, 7, v{L}')
        e.i(f'v_lshrrev_b32 v{l4}, 4, v{L}')
        e.i(f'v_and_b32 v{t0}, 1, v{l4}')
        e.i(f'v_lshlrev_b32 v{t0}, 2, v{t0}')
        e.i(f'v_xor_b32 v{ctr}, v{cp}, v{t0}')
        e.i(f'v_lshlrev_b32 v{ctr}, 4, v{ctr}')
        e.i(f'v_lshl_add_u32 v{V_DWQ}, v{rowp}, 13, v{ctr}')
        for j in range(1, 4):
            e.i(f'v_add_u32 v{V_DWQ+j}, {j*(8*8192-1024)}, v{V_DWQ}')
        cb0, cb1 = V_T+7, V_T+8
        e.i(f'v_xor_b32 v{cb0}, v{cp}, v{l4}')
        e.i(f'v_lshlrev_b32 v{cb0}, 4, v{cb0}')
        e.i(f'v_xor_b32 v{cb1}, 64, v{cb0}')
        e.i(f'v_lshl_add_u32 v{t0}, v{V_X}, 4, v{rowp}')
        e.i(f'v_mul_u32_u24 v{t0}, 896, v{t0}')
        e.i(f'v_add_u32 v{V_X+1}, v{t0}, v{cb0}')
        e.i(f'v_add_u32 v{V_X+2}, v{t0}, v{cb1}')
        e.i(f'v_add_u32 v{V_X+2}, {8*896-1024}, v{V_X+2}')
        e.i('s_waitcnt lgkmcnt(0)')
        self.ts0()
        def mk(r, base, off_sgpr, nrec):
            e.i(f's_add_u32 s{r}, s{base}, s{off_sgpr}')
            e.i(f's_addc_u32 s{r+1}, s{base+1}, 0')
            if isinstance(nrec, int):
                e.i(f's_mov_b32 s{r+2}, {nrec}')
            else:
                e.i(f's_sub_u32 s{r+2}, {nrec[0]}, s{nrec[1]}')
            e.i(f's_mov_b32 s{r+3}, 0x20000')
        e.i(f's_lshl_b32 s{S_T0}, s{S_B}, 1')
        e.i(f's_add_u32 s{S_T0}, s{S_T0}, s{S_HALF}')
        e.i(f's_mul_i32 s{S_T1}, s{S_T0}, {56*896}')
        mk(R_X, S_X, S_T1, 56*896)
        e.i(f's_lshl_b32 s{S_T1}, s{S_HQ}, 9')
        e.i(f's_lshl_b32 s{S_T2}, s{S_W}, 7')
        e.i(f's_add_u32 s{S_T1}, s{S_T1}, s{S_T2}')
        mk(R_WQ, S_WQ, S_T1, (448*8192, S_T1))
        e.i(f's_lshl_b32 s{S_T3}, s{S_W}, 11')
        self.xtok = []
        nx_first = self.a.xfirst
        def xdma(cb):
            e.i(f's_add_u32 m0, s{S_T3}, {ACT + cb*8192}')
            e.i(f's_mov_b32 s{S_SOFF}, {cb*128}')
            e.vmem(f'buffer_load_dwordx4 v{V_X+1}, {srd(R_X)}, s{S_SOFF} offen{self.a.xflags} lds')
            self.xtok.append(e.vmem(f'buffer_load_dwordx4 v{V_X+2}, {srd(R_X)}, s{S_SOFF} offen offset:1024{self.a.xflags} lds'))
        for cb in range(7): xdma(cb)
        self.ts0()
        for _ in range(8): self.dma()
        e.i(f's_lshl_b32 s{S_T1}, s{S_B}, 3')
        e.i(f's_add_u32 s{S_T1}, s{S_T1}, s{S_HKV}')
        e.i(f's_lshl_b32 s{S_T1}, s{S_T1}, 18')
        e.i(f's_add_u32 s{S_T3}, s{S_T1}, s{S_T2}')
        mk(R_V, S_V, S_T3, (262144, S_T2))
        e.i(f's_lshl_b32 s{S_T3}, s{S_W}, 16')
        e.i(f's_add_u32 s{S_T3}, s{S_T3}, s{S_T1}')
        mk(R_K, S_K, S_T3, 65536)
        for _ in range(8): self.dma()
        e.i(f's_mul_i32 s{S_T1}, s{S_HQ}, {256*896}')
        e.i(f's_add_u32 s{S_T1}, s{S_T1}, s{S_T2}')
        mk(R_WO0, S_WO, S_T1, (256*896, S_T2))
        e.i(f's_add_u32 s{S_T1}, s{S_T1}, 512')
        e.i(f's_add_u32 s{S_T3}, s{S_T2}, 512')
        mk(R_WO1, S_WO, S_T1, (256*896, S_T3))
        e.i(f's_cmp_lt_u32 s{S_W}, 3')
        e.i(f's_cselect_b32 s{R_WO1+2}, s{R_WO1+2}, 0')
        e.i(f's_mul_i32 s{S_T1}, s{S_T0}, {56*16}')
        e.i(f's_add_u32 s{S_T1}, s{S_T1}, s{S_HQ}')
        e.i(f's_lshl_b32 s{S_T1}, s{S_T1}, 10')
        e.i(f's_lshl_b32 s{S_T3}, s{S_W}, 17')
        e.i(f's_add_u32 s{S_T1}, s{S_T1}, s{S_T3}')
        mk(R_P0, S_WS, S_T1, 8*16384)
        e.i(f's_add_u32 s{S_T1}, s{S_T1}, {4*8*16384}')
        mk(R_P1, S_WS, S_T1, 8*16384)
        e.i(f's_cmp_lt_u32 s{S_W}, 3')
        e.i(f's_cselect_b32 s{R_P1+2}, s{R_P1+2}, 0')
        for _ in range(8): self.dma()
        e.i(f'v_lshlrev_b32 v{t0}, 9, v{rowp}')
        e.i(f'v_add_u32 v{V_DK}, v{t0}, v{cb0}')
        e.i(f'v_add_u32 v{V_DK+1}, v{t0}, v{cb1}')
        e.i(f'v_add_u32 v{V_DK+2}, {2*3072}, v{V_DK}')
        e.i(f'v_add_u32 v{V_DK+3}, {3*3072}, v{V_DK+1}')
        e.i(f'v_add_u32 v{V_DK+1}, 3072, v{V_DK+1}')
        e.i(f'v_add_u32 v{V_DV}, v{t0}, v{ctr}')
        for j in range(1, 4):
            e.i(f'v_add_u32 v{V_DV+j}, {3072*j}, v{V_DV}')
        e.i(f'v_mul_u32_u24 v{t0}, 896, v{rowp}')
        e.i(f'v_add_u32 v{V_DWO}, v{t0}, v{ctr}')
        for j in range(1, 4):
            e.i(f'v_add_u32 v{V_DWO+j}, {6144*j}, v{V_DWO}')
        lo, hi = V_T+9, V_T+10
        e.i(f'v_and_b32 v{lo}, 31, v{L}')
        e.i(f'v_lshrrev_b32 v{hi}, 5, v{L}')
        e.i(f'v_bfe_u32 v{t0}, v{lo}, 1, 3')
        e.i(f'v_xor_b32 v{t0}, v{t0}, v{hi}')
        e.i(f'v_lshlrev_b32 v{t0}, 4, v{t0}')
        e.i(f'v_lshl_add_u32 v{V_AB}, v{lo}, 7, v{t0}')
        for s in range(1, 4):
            e.i(f'v_xor_b32 v{V_AB+s}, {32*s}, v{V_AB}')
        g1, r_, c4 = V_T+11, V_T+12, V_T+13
        e.i(f'v_bfe_u32 v{g1}, v{L}, 4, 1')
        e.i(f'v_bfe_u32 v{r_}, v{L}, 2, 2')
        e.i(f'v_and_b32 v{c4}, 3, v{L}')
        e.i(f'v_lshrrev_b32 v{t0}, 1, v{r_}')
        e.i(f'v_lshlrev_b32 v{t0}, 6, v{t0}')
        e.i(f'v_lshl_add_u32 v{t0}, v{g1}, 5, v{t0}')
        e.i(f'v_lshl_add_u32 v{t0}, v{r_}, 7, v{t0}')
        e.i(f'v_add_u32 v{t0}, s{S_RING}, v{t0}')
        e.i(f'v_and_b32 v{t1}, 1, v{c4}')
        e.i(f'v_lshlrev_b32 v{t1}, 4, v{t1}')
        e.i(f'v_lshrrev_b32 v{t2}, 1, v{c4}')
        e.i(f'v_lshl_add_u32 v{t1}, v{t2}, 3, v{t1}')
        e.i(f'v_add_u32 v{t1}, v{t1}, v{t0}')
        e.i(f'v_lshl_add_u32 v{t2}, v{c4}, 3, v{t0}')
        e.i(f'v_lshl_add_u32 v{V_TRQ}, v{hi}, 10, v{t1}')
        e.i(f'v_lshl_add_u32 v{V_TRV}, v{hi}, 9, v{t2}')
        e.i(f'v_lshl_add_u32 v{V_TRO}, v{hi}, 9, v{t1}')
        for r in (V_TRQ, V_TRV, V_TRO):
            e.i(f'v_xor_b32 v{r+1}, 64, v{r}')
        e.i(f'v_lshlrev_b32 v{V_LIN}, 4, v{L}')
        e.i(f'v_lshl_add_u32 v{V_LINW}, v{V_X}, 14, v{V_LIN}')
        e.i(f'v_lshlrev_b32 v{t0}, 2, v{L}')
        e.i(f'v_lshl_add_u32 v{V_STW}, v{V_X}, 8, v{t0}')
        e.i(f'v_lshlrev_b32 v{t0}, 2, v{lo}')
        e.i(f'v_lshl_add_u32 v{V_STR}, v{V_X}, 14, v{t0}')
        e.i(f'v_add_u32 v{V_SUMR}, {15*1024+384}, v{t0}')
        e.i(f'v_lshl_add_u32 v{V_SUMW}, v{hi}, 9, v{V_SUMR}')
        e.i(f'v_lshl_add_u32 v{V_SUMW}, v{V_X}, 14, v{V_SUMW}')
        e.i(f'v_mov_b32 v{V_SO0}, v{V_LIN}')
        e.i(f'v_cmp_gt_u32 vcc, 24, v{lo}')
        e.i(f'v_mov_b32 v{t0}, 0x40000000')
        e.i('s_nop 1')
        e.i(f'v_cndmask_b32 v{V_SO1}, v{t0}, v{V_LIN}, vcc')
        self.ts0()
        e.wait(vm=self.xtok[-1])
        self.ts0()
        e.i('s_barrier')

    def write_frags(self, acc, scale=None):
        e = self.e
        k = 0
        for t in range(2):
            for mt in range(2):
                base = acc + (t*2+mt)*16
                for s in range(2):
                    tmp = V_T + (k % 4) * 4; k += 1
                    for d in range(4):
                        a = base + 8*s + 2*d
                        if scale is not None:
                            e.i(f'v_mul_f32 v{a}, v{a}, v{scale+mt}')
                            e.i(f'v_mul_f32 v{a+1}, v{a+1}, v{scale+mt}')
                        e.i(f'v_cvt_pk_bf16_f32 v{tmp+d}, v{a}, v{a+1}')
                    e.lds(f'ds_write_b128 v{V_LINW}, {vr(tmp,4)} offset:{8192 + ((2*t+s)*2+mt)*1024}')
                    if self.can_dma(): self.dma()

    def read_bfrags(self):
        e = self.e
        toks = {}
        for kk in range(16):
            for mt in range(2):
                off = (kk >> 2) * 16384 + 8192 + ((kk & 3) * 2 + mt) * 1024
                toks[(kk, mt)] = e.lds(f'ds_read_b128 {ar(A_B + (kk*2+mt)*4, 4)}, v{V_LIN} offset:{off}')
        return toks

    def dump_act(self):
        e = self.e
        e.wait_vm_all(); e.wait_lg_all()
        e.i('s_barrier')
        e.i(f's_lshl_b32 s{S_T0}, s2, 16')
        e.i(f's_add_u32 s{S_T0}, s{S_T0}, {64<<20}')
        e.i(f's_add_u32 s{R_DBG}, s{S_WS}, s{S_T0}')
        e.i(f's_addc_u32 s{R_DBG+1}, s{S_WS+1}, 0')
        e.i(f's_mov_b32 s{R_DBG+2}, 65536')
        e.i(f's_mov_b32 s{R_DBG+3}, 0x20000')
        for k in range(16):
            e.i(f'ds_read_b128 {vr(V_T,4)}, v{V_LINW} offset:{k*1024}')
            e.i('s_waitcnt lgkmcnt(0)')
            e.i(f's_mov_b32 s{S_T0}, {k*1024}')
            e.i(f'buffer_store_dwordx4 {vr(V_T,4)}, v{V_LINW}, {srd(R_DBG)}, s{S_T0} offen')
            e.i('s_waitcnt vmcnt(0)')
        e.i('s_endpgm')

    def tr_steps(self, G0, nsteps, vtr, ustride, acc, bsrc, j0=0):
        steps = []
        for kk in range(nsteps):
            G = G0 + kk // 2
            base = self.slot_off(G) + (kk & 1) * 2048
            j = j0 + kk
            reads = []; idx = {}
            def addA(t):
                for u in range(2):
                    idx[('A', t, u)] = len(reads)
                    reads.append(f'ds_read_b64_tr_b16 {ar(self.fbuf(j, t) + 2*u, 2)}, v{vtr+t} offset:{base + u*ustride}')
            breg = {}
            def addB(mt):
                b = bsrc(kk, mt)
                if b[0] == 'reg':
                    breg[mt] = b[1]
                else:
                    idx[('B', mt)] = len(reads)
                    breg[mt] = ar(self.fbuf(j, 2 + mt), 4)
                    reads.append(f'ds_read_b128 {breg[mt]}, v{b[1]} offset:{b[2]}')
            addA(0); addB(0); addB(1); addA(1)
            mf = []
            for (t, mt) in ((0, 0), (0, 1), (1, 0), (1, 1)):
                d = vr(acc + (t*2+mt)*16, 16)
                c = '0' if kk == 0 else d
                deps = [idx[('A', t, 0)], idx[('A', t, 1)]]
                if ('B', mt) in idx: deps.append(idx[('B', mt)])
                mf.append((f'v_mfma_f32_32x32x16_bf16 {d}, {ar(self.fbuf(j, t), 4)}, {breg[mt]}, {c}', deps))
            p = 4*G + (kk & 1)*2
            steps.append(dict(reads=reads, need=p+1, free=p+2, mfmas=mf))
        return steps

    def main(self):
        e = self.e; a = self.a
        self.prologue()
        self.ts()
        e.c('phase 1')
        steps = self.tr_steps(0, 28, V_TRQ, 512, V_O,
                              lambda kk, mt: ('lds', V_AB + (kk & 3), ACT + (kk >> 2)*8192 + mt*4096))
        self.gemm(steps)
        self.ts()
        e.i('s_barrier')
        e.i('s_nop 7'); e.i('s_nop 3')
        for s in range(4):
            e.i(f'v_add_u32 v{V_AB+s}, s{S_RING}, v{V_AB+s}')
        self.write_frags(V_O)
        e.wait_lg_all()
        e.i('s_barrier')
        if a.stop == 1: return self.dump_act()
        self.read_bfrags()
        e.wait_lg_all()
        self.ts()
        e.c('phase 2')
        steps = []
        j = 0
        for tt in range(4):
            for cb in range(4):
                G = 14 + tt*4 + cb
                for half in range(2):
                    reads = []; mf = []
                    for ss in range(2):
                        s = half*2 + ss
                        KK = cb*4 + s
                        fb = ar(self.fbuf(j, ss), 4)
                        reads.append(f'ds_read_b128 {fb}, v{V_AB+s} offset:{self.slot_off(G)}')
                        for mt in range(2):
                            d = vr(V_S + (tt*2+mt)*16, 16)
                            c = '0' if KK == 0 else d
                            mf.append((f'v_mfma_f32_32x32x16_bf16 {d}, {fb}, {ar(A_B + (KK*2+mt)*4, 4)}, {c}', [ss]))
                    steps.append(dict(reads=reads, need=4*G+3, free=(4*G+4 if half == 1 else 4*G), mfmas=mf))
                    j += 1
        self.gemm(steps)
        self.ts()
        e.c('softmax')
        e.i('s_nop 7'); e.i('s_nop 3')
        for mt in range(2):
            regs = [V_S + (tt*2+mt)*16 + r for tt in range(4) for r in range(16)]
            e.i(f'v_max3_f32 v{V_MX+mt}, v{regs[0]}, v{regs[1]}, v{regs[2]}')
            e.i(f'v_max3_f32 v{V_T+mt}, v{regs[3]}, v{regs[4]}, v{regs[5]}')
            k = 6; flip = 0
            while k < 64:
                tgt = V_MX+mt if flip == 0 else V_T+mt
                e.i(f'v_max3_f32 v{tgt}, v{regs[k]}, v{regs[k+1]}, v{tgt}')
                k += 2; flip ^= 1
            e.i(f'v_max_f32 v{V_MX+mt}, v{V_MX+mt}, v{V_T+mt}')
        e.i('s_nop 1')
        e.i(f'v_permlane32_swap_b32 v{V_MX}, v{V_MX+1}')
        e.i('s_nop 1')
        e.i(f'v_max_f32 v{V_MX}, v{V_MX}, v{V_MX+1}')
        for y in range(4):
            e.lds(f'ds_write_b32 v{V_STW}, v{V_MX} offset:{y*16384}')
        e.wait_lg_all()
        e.i('s_barrier')
        for x in range(4):
            e.lds(f'ds_read2_b32 {vr(V_T+2*x,2)}, v{V_STR} offset0:{x*64} offset1:{x*64+32}')
        e.wait_lg_all()
        for mt in range(2):
            e.i(f'v_max3_f32 v{V_MX+mt}, v{V_T+mt}, v{V_T+2+mt}, v{V_T+4+mt}')
            e.i(f'v_max_f32 v{V_MX+mt}, v{V_MX+mt}, v{V_T+6+mt}')
            e.i(f'v_mul_f32 v{V_NM+mt}, s{S_C}, v{V_MX+mt}')
            e.i(f'v_mov_b32 v{V_SUM+mt}, 0')
        k = 0
        for tt in range(4):
            for s in range(2):
                for mt in range(2):
                    base = V_S + (tt*2+mt)*16 + 8*s
                    tmp = V_T + (k % 4)*4; k += 1
                    for r in range(8):
                        e.i(f'v_fma_f32 v{base+r}, v{base+r}, s{S_C}, -v{V_NM+mt}')
                    for r in range(8):
                        e.i(f'v_exp_f32 v{base+r}, v{base+r}')
                    for d in range(4):
                        e.i(f'v_cvt_pk_bf16_f32 v{tmp+d}, v{base+2*d}, v{base+2*d+1}')
                    e.lds(f'ds_write_b128 v{V_LINW}, {vr(tmp,4)} offset:{((tt*2+s)*2+mt)*1024}')
                    for d in range(4):
                        e.i(f'v_add_f32 v{base+2*d}, v{base+2*d}, v{base+2*d+1}')
                    e.i(f'v_add_f32 v{base}, v{base}, v{base+2}')
                    e.i(f'v_add_f32 v{base+4}, v{base+4}, v{base+6}')
                    e.i(f'v_add_f32 v{base}, v{base}, v{base+4}')
                    e.i(f'v_add_f32 v{V_SUM+mt}, v{V_SUM+mt}, v{base}')
                    if self.can_dma(): self.dma()
        e.i('s_nop 1')
        e.i(f'v_permlane32_swap_b32 v{V_SUM}, v{V_SUM+1}')
        e.i('s_nop 1')
        e.i(f'v_add_f32 v{V_SUM}, v{V_SUM}, v{V_SUM+1}')
        e.lds(f'ds_write_b32 v{V_SUMW}, v{V_SUM}')
        e.wait_lg_all()
        e.i('s_barrier')
        if a.stop == 2: return self.dump_act()
        for x in range(4):
            e.lds(f'ds_read_b32 v{V_X+x if x<3 else V_T}, v{V_SUMR} offset:{x*16384}')
            e.lds(f'ds_read_b32 v{V_X+3+x if x<3 else V_T+1}, v{V_SUMR} offset:{x*16384+512}')
        e.wait_lg_all()
        for mt in range(2):
            b = V_X + 3*mt
            e.i(f'v_add_f32 v{b}, v{b}, v{b+1}')
            e.i(f'v_add_f32 v{b+2}, v{b+2}, v{V_T+mt}')
            e.i(f'v_add_f32 v{b}, v{b}, v{b+2}')
            e.i(f'v_rcp_f32 v{V_SUM+mt}, v{b}')
        self.ts()
        e.c('phase 3')
        def psrc(kk, mt):
            tt, wp, s = kk >> 3, (kk >> 1) & 3, kk & 1
            return ('lds', V_LIN, wp*16384 + ((tt*2+s)*2+mt)*1024)
        steps = self.tr_steps(30, 32, V_TRV, 1024, V_O, psrc)
        self.gemm(steps)
        self.ts()
        e.i('s_barrier')
        e.i('s_nop 7'); e.i('s_nop 3')
        self.write_frags(V_O, scale=V_SUM)
        e.wait_lg_all()
        e.i('s_barrier')
        if a.stop == 3: return self.dump_act()
        self.read_bfrags()
        e.wait_lg_all()
        self.ts()
        e.c('phase 4')
        osrc = lambda kk, mt: ('reg', ar(A_B + (kk*2+mt)*4, 4))
        def store_ops(ps):
            ops = []
            acc = V_S + ps*64
            R = R_P0 if ps == 0 else R_P1
            k = 0
            for t in range(2):
                for mt in range(2):
                    for s in range(2):
                        tmp = V_T + (k % 4)*4; k += 1
                        b = acc + (t*2+mt)*16 + 8*s
                        for d in range(4):
                            ops.append(lambda tmp=tmp, d=d, b=b: e.i(f'v_cvt_pk_bf16_f32 v{tmp+d}, v{b+2*d}, v{b+2*d+1}'))
                        f = (t*2+mt)*2 + s
                        def st(tmp=tmp, f=f, mt=mt, R=R):
                            e.i(f's_mov_b32 s{S_ST}, {f*16384}')
                            e.vmem(f'buffer_store_dwordx4 {vr(tmp,4)}, v{V_SO0+mt}, {srd(R)}, s{S_ST} offen{a.stflags}')
                        ops.append(st)
            return ops
        s0 = self.tr_steps(46, 16, V_TRO, 1024, V_S, osrc)
        s1 = self.tr_steps(54, 16, V_TRO, 1024, V_S + 64, osrc, j0=16)
        nop = lambda: None
        extra = [nop]*(16*4 + 8) + store_ops(0)
        self.gemm(s0 + s1, extra=extra, per_gap_extra=1)
        self.ts()
        e.i('s_nop 7'); e.i('s_nop 3')
        for op in store_ops(1): op()
        if a.ts:
            e.wait_vm_all()
            self.ts()
            if a.dbgwg >= 0:
                e.i(f's_add_u32 s{R_DBG}, s{S_WS}, {129<<20}')
                e.i(f's_addc_u32 s{R_DBG+1}, s{S_WS+1}, 0')
                e.i(f's_lshl_b32 s{S_T0}, s2, 2')
                e.i(f's_add_u32 s{S_T0}, s{S_T0}, s{S_W}')
                e.i(f's_cmp_eq_u32 s{S_T0}, {a.dbgwg*4}')
                e.i(f's_cselect_b32 s{R_DBG+2}, 64, 0')
                e.i(f's_mov_b32 s{R_DBG+3}, 0x20000')
                e.i(f'v_mov_b32 v{V_T+1}, 0')
                for k in range(1, self.nts):
                    if a.spin is not None:
                        e.i(f's_sub_u32 s{S_T0}, s{S_TS+2*k+1}, s{S_TS+2*k-1 if k > 1 else 100}')
                    else:
                        e.i(f's_sub_u32 s{S_T0}, s{S_TS+2*k}, s{S_TS+2*k-2}')
                    e.i(f'v_mov_b32 v{V_T}, s{S_T0}')
                    e.i(f'buffer_store_dword v{V_T}, v{V_T+1}, {srd(R_DBG)}, 0 offen offset:{4*(k-1)}')
                    e.i('s_nop 1')
                e.i(f's_sub_u32 s{S_T0}, s{S_TS+2*self.nts-1}, s100')
                e.i(f'v_mov_b32 v{V_T}, s{S_T0}')
                e.i(f'buffer_store_dword v{V_T}, v{V_T+1}, {srd(R_DBG)}, 0 offen offset:60')
                e.i('s_nop 1')
            e.i(f's_lshl_b32 s{S_T0}, s2, 2')
            e.i(f's_add_u32 s{S_T0}, s{S_T0}, s{S_W}')
            e.i(f's_lshl_b32 s{S_T0}, s{S_T0}, 7')
            e.i(f's_add_u32 s{S_T0}, s{S_T0}, {128<<20}')
            e.i(f's_add_u32 s{R_DBG}, s{S_WS}, s{S_T0}')
            e.i(f's_addc_u32 s{R_DBG+1}, s{S_WS+1}, 0')
            e.i(f's_mov_b32 s{R_DBG+2}, 128')
            e.i(f's_mov_b32 s{R_DBG+3}, 0x20000')
            e.i(f'v_mov_b32 v{V_T+1}, 0')
            for k in range(self.nts):
                e.i(f'v_mov_b32 v{V_T}, s{S_TS+2*k}')
                e.i(f'buffer_store_dword v{V_T}, v{V_T+1}, {srd(R_DBG)}, 0 offen offset:{4*k}')
                e.i('s_nop 1')
                if k:
                    e.i(f'v_mov_b32 v{V_T}, s{S_TS+2*k+1}')
                    e.i(f'buffer_store_dword v{V_T}, v{V_T+1}, {srd(R_DBG)}, 0 offen offset:{4*(16+k)}')
                    e.i('s_nop 1')
            e.i(f's_memrealtime s[{S_TS}:{S_TS+1}]')
            e.i('s_waitcnt lgkmcnt(0)')
            e.i(f'v_mov_b32 v{V_T}, s{S_TS}')
            e.i(f'buffer_store_dword v{V_T}, v{V_T+1}, {srd(R_DBG)}, 0 offen offset:{4*15}')
            e.i('s_nop 1')
            e.i(f'v_mov_b32 v{V_T}, s100')
            e.i(f'buffer_store_dword v{V_T}, v{V_T+1}, {srd(R_DBG)}, 0 offen offset:{4*16}')

def reduce_kernel(a):
    o = []
    i = lambda s: o.append('    ' + s)
    i('s_cmp_ge_u32 s2, 224')
    i('s_cbranch_scc1 L_rend')
    i('s_load_dwordx2 s[4:5], s[0:1], 40')
    i('s_load_dwordx2 s[6:7], s[0:1], 56')
    i('s_mul_i32 s8, s2, 4682')
    i('s_lshr_b32 s8, s8, 16')
    i('s_mul_i32 s9, s8, 14')
    i('s_sub_u32 s9, s2, s9')
    i('v_lshrrev_b32 v1, 6, v0')
    i('v_and_b32 v2, 63, v0')
    i('v_lshlrev_b32 v3, 14, v1')
    i('v_lshl_add_u32 v3, v2, 4, v3')
    i('v_and_b32 v4, 31, v0')
    i('v_bfe_u32 v5, v0, 5, 1')
    i('v_bfe_u32 v6, v0, 6, 1')
    i('v_lshrrev_b32 v7, 7, v0')
    i('v_lshl_add_u32 v8, v7, 5, v4')
    i('v_cmp_gt_u32 vcc, 56, v8')
    i('v_mov_b32 v9, 0x40000000')
    i('v_mul_u32_u24 v10, 896, v8')
    i('v_lshl_add_u32 v10, v6, 5, v10')
    i('v_lshl_add_u32 v10, v5, 4, v10')
    i('v_cndmask_b32 v3, v9, v3, vcc')
    i('v_cndmask_b32 v10, v9, v10, vcc')
    i('v_add_u32 v11, 4096, v3')
    i('v_add_u32 v12, 8192, v3')
    i('v_add_u32 v13, 12288, v3')
    i('s_waitcnt lgkmcnt(0)')
    i('s_lshl_b32 s10, s2, 16')
    i('s_add_u32 s12, s6, s10')
    i('s_addc_u32 s13, s7, 0')
    i('s_mov_b32 s14, 65536')
    i('s_mov_b32 s15, 0x20000')
    av = [3, 11, 12, 13]
    for h in range(16):
        off = f' offset:{(h&3)*1024}' if h & 3 else ''
        i(f'buffer_load_dwordx4 v[{16+4*h}:{19+4*h}], v{av[h>>2]}, s[12:15], 0 offen{off}{a.rdflags}')
    i(f's_mul_i32 s10, s8, {56*896}')
    i('s_lshl_b32 s11, s9, 6')
    i('s_add_u32 s10, s10, s11')
    i('s_add_u32 s16, s4, s10')
    i('s_addc_u32 s17, s5, 0')
    i(f's_sub_u32 s18, {896*896}, s10')
    i('s_mov_b32 s19, 0x20000')
    i('s_mov_b32 s20, 0xffff0000')
    for h in range(16):
        i(f's_waitcnt vmcnt({15-h})')
        for d in range(4):
            src = 16 + 4*h + d
            if h == 0:
                i(f'v_lshlrev_b32 v{80+2*d}, 16, v{src}')
                i(f'v_and_b32 v{81+2*d}, s20, v{src}')
            else:
                i(f'v_lshlrev_b32 v{88+2*d}, 16, v{src}')
                i(f'v_and_b32 v{89+2*d}, s20, v{src}')
                i(f'v_add_f32 v{80+2*d}, v{80+2*d}, v{88+2*d}')
                i(f'v_add_f32 v{81+2*d}, v{81+2*d}, v{89+2*d}')
    for d in range(4):
        i(f'v_cvt_pk_bf16_f32 v{88+d}, v{80+2*d}, v{81+2*d}')
    i('buffer_store_dwordx4 v[88:91], v10, s[16:19], 0 offen')
    if a.dbgwg >= 0:
        i('s_load_dwordx2 s[24:25], s[0:1], 48')
        i(f's_add_u32 s12, s6, {129<<20}')
        i('s_addc_u32 s13, s7, 0')
        i('s_mov_b32 s14, 64')
        i('v_lshlrev_b32 v1, 2, v0')
        i('buffer_load_dword v2, v1, s[12:15], 0 offen')
        i('s_waitcnt vmcnt(0) lgkmcnt(0)')
        i('s_mov_b32 s26, 64')
        i('s_mov_b32 s27, 0x20000')
        i('buffer_store_dword v2, v1, s[24:27], 0 offen')
    o.append('L_rend:')
    i('s_endpgm')
    return o

HEADER = """; GQA block (Q-proj + attention + O-proj partials) followed by a head reduction.
; @launch kernel=gqa_main_kernel grid=(256,1,1) block=(256,1,1) lds=163840
; @launch kernel=gqa_reduce_kernel grid=(224,1,1) block=(256,1,1) lds=0
.amdgcn_target "amdgcn-amd-amdhsa--gfx950"
.text
"""

def kd(name, vgpr, sgpr, accum):
    return f""".p2align 6
.amdhsa_kernel {name}
  .amdhsa_next_free_vgpr {vgpr}
  .amdhsa_next_free_sgpr {sgpr}
  .amdhsa_accum_offset {accum}
  .amdhsa_group_segment_fixed_size 0
  .amdhsa_kernarg_size 64
  .amdhsa_user_sgpr_count 2
  .amdhsa_user_sgpr_kernarg_segment_ptr 1
  .amdhsa_system_sgpr_workgroup_id_x 1
.end_amdhsa_kernel
"""

def fn(name):
    return f".globl {name}\n.p2align 8\n.type {name},@function\n{name}:\n"

def spin_kernel(a):
    return f'''
    s_cmp_ge_u32 s2, 1
    s_cbranch_scc1 L_send
    s_load_dwordx2 s[6:7], s[0:1], 56
    s_memrealtime s[8:9]
    s_waitcnt lgkmcnt(0)
    s_add_u32 s12, s6, {129<<20}
    s_addc_u32 s13, s7, 0
    s_mov_b32 s14, 64
    s_mov_b32 s15, 0x20000
    v_mov_b32 v1, 0
    buffer_load_dword v2, v1, s[12:15], 0 offen offset:{4*max(a.spin,0)}
    s_waitcnt vmcnt(0)
    v_readfirstlane_b32 s16, v2
    s_nop 3
    s_min_u32 s16, s16, 5000
    s_mul_i32 s16, s16, {0 if a.spin < 0 else a.spinmul}
    s_add_u32 s16, s16, 200
    s_mov_b32 s17, 200000
L_spin:
    s_memrealtime s[10:11]
    s_waitcnt lgkmcnt(0)
    s_sub_u32 s10, s10, s8
    s_sub_u32 s17, s17, 1
    s_cmp_eq_u32 s17, 0
    s_cbranch_scc1 L_send
    s_cmp_lt_u32 s10, s16
    s_cbranch_scc1 L_spin
L_send:
    s_endpgm
'''

def build(args):
    g = Gen(args)
    g.main()
    s = HEADER
    if args.spin is not None:
        s = s.replace('.amdgcn_target', '; @launch kernel=gqa_spin_kernel grid=(1,1,1) block=(64,1,1) lds=0\n.amdgcn_target')
    s += fn('gqa_main_kernel') + '\n'.join(g.e.out) + '\nL_end:\n    s_endpgm\n'
    s += fn('gqa_reduce_kernel') + '\n'.join(reduce_kernel(args)) + '\n'
    if args.spin is not None:
        s += fn('gqa_spin_kernel') + spin_kernel(args)
    s += '.section .rodata,"a"\n'
    if args.spin is not None:
        s += kd('gqa_spin_kernel', 8, 32, 8)
    s += kd('gqa_main_kernel', 512, 102, 256)
    s += kd('gqa_reduce_kernel', 96, 32, 96)
    return s

if __name__ == '__main__':
    p = argparse.ArgumentParser()
    p.add_argument('-o', default=f'cdna_kernels/{NAME}.s')
    p.add_argument('--pd', type=int, default=2)
    p.add_argument('--ts', action='store_true')
    p.add_argument('--tsp', action='store_true')
    p.add_argument('--badmap', action='store_true')
    p.add_argument('--dbgwg', type=int, default=-1)
    p.add_argument('--spin', type=int, default=None)
    p.add_argument('--spinmul', type=int, default=2)
    p.add_argument('--stop', type=int, default=0)
    p.add_argument('--nomfma', action='store_true')
    p.add_argument('--xfirst', type=int, default=7)
    p.add_argument('--stflags', default='')
    p.add_argument('--ldflags', default='')
    p.add_argument('--xflags', default='')
    p.add_argument('--kvflags', default='')
    p.add_argument('--rdflags', default='')
    args = p.parse_args()
    for k in ('stflags', 'ldflags', 'xflags', 'rdflags', 'kvflags'):
        v = getattr(args, k).replace('+', ' ').replace('none', '')
        setattr(args, k, (' ' + v) if v else '')
    open(args.o, 'w').write(build(args))
```

```python
import sys
def wrap(body, grid, block, lds, vg=128):
    return f"""; @launch kernel=a_kernel grid=({grid},1,1) block=({block},1,1) lds={lds}
.amdgcn_target "amdgcn-amd-amdhsa--gfx950"
.text
.globl a_kernel
.p2align 8
.type a_kernel,@function
a_kernel:
{body}
    s_endpgm
.section .rodata,"a"
.p2align 6
.amdhsa_kernel a_kernel
  .amdhsa_next_free_vgpr {vg}
  .amdhsa_next_free_sgpr 102
  .amdhsa_accum_offset {vg}
  .amdhsa_group_segment_fixed_size 0
  .amdhsa_kernarg_size 64
  .amdhsa_user_sgpr_count 2
  .amdhsa_user_sgpr_kernarg_segment_ptr 1
  .amdhsa_system_sgpr_workgroup_id_x 1
.end_amdhsa_kernel
"""
PRE = """
    s_load_dwordx16 s[4:19], s[0:1], 0
    v_and_b32 v1, 63, v0
    v_lshrrev_b32 v2, 6, v0
    s_nop 1
    v_readfirstlane_b32 s52, v2
    s_waitcnt lgkmcnt(0)
    s_mov_b32 s20, s6
    s_mov_b32 s21, s7
    s_mov_b32 s22, 0x1000000
    s_mov_b32 s23, 0x20000
    s_mov_b32 s24, s8
    s_mov_b32 s25, s9
    s_mov_b32 s26, 0x1000000
    s_mov_b32 s27, 0x20000
"""
def post(n, nw):
    o = f"""
    s_waitcnt vmcnt(0) lgkmcnt(0)
    s_mul_i32 s53, s2, {nw}
    s_add_u32 s53, s53, s52
    s_lshl_b32 s53, s53, 7
    s_add_u32 s53, s53, {128<<20}
    s_add_u32 s28, s18, s53
    s_addc_u32 s29, s19, 0
    s_mov_b32 s30, 128
    s_mov_b32 s31, 0x20000
    v_mov_b32 v4, 0
"""
    for k in range(n):
        o += f"    v_mov_b32 v3, s{60+2*k}\n    buffer_store_dword v3, v4, s[28:31], 0 offen offset:{4*k}\n    s_nop 1\n"
    return o

def cap(grid, nw, per, sparse=False):
    b = PRE
    b += f"""
    s_mul_i32 s53, s2, {nw}
    s_add_u32 s53, s53, s52
    s_lshl_b32 s54, s53, {16 if not sparse else 19}
    s_and_b32 s54, s54, 0xffffff
    v_lshlrev_b32 v5, {4 if not sparse else 7}, v1
    s_lshl_b32 s55, s52, 10
    s_mov_b32 m0, s55
    s_barrier
"""
    for k in range(20):
        b += f"    s_memtime s[{60+2*k}:{61+2*k}]\n"
        if k == 18:
            b += "    s_waitcnt vmcnt(0)\n"
        elif k < 18:
            for j in range(per):
                if sparse:
                    b += f"    buffer_load_dword v6, v5, s[20:23], s54 offen\n    s_add_u32 s54, s54, 8192\n"
                else:
                    b += f"    buffer_load_dwordx4 v5, s[20:23], s54 offen lds\n    s_add_u32 s54, s54, 1024\n"
    b += post(20, nw)
    return wrap(b, grid, nw*64, 65536)

def order():
    b = PRE
    b += """
    v_lshlrev_b32 v5, 4, v1
    v_lshlrev_b32 v7, 7, v1
    buffer_load_dwordx4 v[8:11], v5, s[24:27], 0 offen
    s_waitcnt vmcnt(0)
    s_barrier
    s_memtime s[60:61]
    buffer_load_dwordx4 v[8:11], v5, s[24:27], 0 offen
    s_waitcnt vmcnt(0)
    s_memtime s[62:63]
    buffer_load_dwordx4 v[8:11], v5, s[24:27], 0 offen sc1
    s_waitcnt vmcnt(0)
    s_memtime s[64:65]
    s_waitcnt lgkmcnt(0)
    s_barrier
    s_cmp_eq_u32 s52, 0
    s_cbranch_scc0 L_w1
    s_memtime s[66:67]
    buffer_load_dword v12, v7, s[20:23], 0 offen
    s_waitcnt vmcnt(0)
    s_memtime s[68:69]
    s_branch L_j
L_w1:
    s_nop 15
    s_nop 15
    s_nop 15
    s_nop 15
    s_nop 15
    s_nop 15
    s_nop 15
    s_nop 15
    s_memtime s[66:67]
    buffer_load_dwordx4 v[8:11], v5, s[24:27], 0 offen sc1
    s_waitcnt vmcnt(0)
    s_memtime s[68:69]
L_j:
"""
    b += post(5, 4)
    return wrap(b, 1, 256, 0)
open('m_cap1.s', 'w').write(cap(1, 1, 3))
open('m_cap4.s', 'w').write(cap(1, 4, 3))
open('m_cap4s.s', 'w').write(cap(1, 4, 1, True))
open('m_order.s', 'w').write(order())
```

```python
from micro1 import *
def mk(pat, wf, rf, n=12):
    b = PRE
    b += f"""
    s_mov_b32 s32, s18
    s_mov_b32 s33, s19
    s_mov_b32 s34, 0x4000000
    s_mov_b32 s35, 0x20000
    v_lshlrev_b32 v5, 4, v1
    s_lshl_b32 s53, s2, 2
    s_add_u32 s53, s53, s52
    s_lshr_b32 s56, s53, 4
    s_lshl_b32 s56, s56, 18
    s_and_b32 s57, s53, 15
    s_lshl_b32 s58, s57, 10
    s_lshl_b32 s59, s57, 14
    s_add_u32 s58, s58, s56
    s_add_u32 s59, s59, s56
    s_sleep 10
    s_barrier
    s_memtime s[60:61]
"""
    wb, ws_, rb, rs_ = ('s58', 16384, 's59', 1024) if pat == 'A' else ('s59', 1024, 's58', 16384)
    for k in range(n): b += f"    s_add_u32 s54, {wb}, {k*ws_}\n    buffer_store_dwordx4 v[8:11], v5, s[32:35], s54 offen {wf}\n"
    b += "    s_waitcnt vmcnt(0)\n    s_memtime s[62:63]\n    s_sleep 60\n    s_memtime s[64:65]\n"
    for k in range(n): b += f"    s_add_u32 s54, {rb}, {k*rs_}\n    buffer_load_dwordx4 v[{12+4*k}:{15+4*k}], v5, s[32:35], s54 offen {rf}\n"
    b += "    s_waitcnt vmcnt(0)\n    s_memtime s[66:67]\n    s_waitcnt lgkmcnt(0)\n    s_sub_u32 s66, s66, s64\n    s_add_u32 s64, s60, s66\n"
    b += post(3, 4)
    return wrap(b, 256, 256, 131072)
open('m16_A.s','w').write(mk('A', 'sc1', 'sc1'))
open('m16_B.s','w').write(mk('B', 'sc1', 'sc1'))
open('m16_A01.s','w').write(mk('A', 'sc0 sc1', 'sc0 sc1'))
open('m16_Ant.s','w').write(mk('A', 'sc1 nt', 'sc1'))
open('m16_A6.s','w').write(mk('A', 'sc1', 'sc1', 6))
open('m16_A3.s','w').write(mk('A', 'sc1', 'sc1', 3))
open('m16_Ap.s','w').write(mk('A', '', 'sc1'))
```
